```python
import torch

def _softmax(x, axis=-1):
    return torch.softmax(x, dim=axis)
def _gelu(x):
    return torch.nn.functional.gelu(x, approximate="tanh")
def _silu(x):
    return torch.nn.functional.silu(x)
def _sigmoid(x):
    return torch.sigmoid(x)
def _layernorm(x, axis=-1, eps=1e-5):
    m = x.mean(dim=axis, keepdim=True)
    v = x.var(dim=axis, keepdim=True, unbiased=False)
    return (x - m) / torch.sqrt(v + eps)
def _scatter_add(tgt, idx, src, axis=0):
    return tgt.clone().index_add_(axis, idx, src)
def _segment_sum(src, seg, n):
    out = torch.zeros((n,) + src.shape[1:], dtype=src.dtype)
    return out.index_add_(0, seg, src)
def _pad(x, pw):
    flat = tuple(v for pair in reversed(pw) for v in pair)
    return torch.nn.functional.pad(x, flat)

kernel_name = 'recurrent_scan__sliding_local_dilated__swiglu_ffn__prompt'

def setup_inputs():

    _w = (lambda a: (lambda t: t.to(torch.bfloat16) if t.is_floating_point() else t)(torch.as_tensor(a)))
    def _A_setup():
        B, S, D = 1, 2048, 1024
        return {
            "x": _w((lambda *s: torch.randn(*s, dtype=torch.bfloat16) * 0.05)(B, S, D)),
            "wqkv": _w((lambda *s: torch.randn(*s, dtype=torch.bfloat16) * 0.05)(D, 3 * D)),
            "wo": _w((lambda *s: torch.randn(*s, dtype=torch.bfloat16) * 0.05)(D, D)),
        }
    _A_in = _A_setup()

    def _B_setup():
        B, S, D, F = 1, 2048, 1024, 3584
        return {
            "x": _w((lambda *s: torch.randn(*s, dtype=torch.bfloat16) * 0.05)(B, S, D)),
            "w_gate": _w((lambda *s: torch.randn(*s, dtype=torch.bfloat16) * 0.05)(D, F)),
            "w_up": _w((lambda *s: torch.randn(*s, dtype=torch.bfloat16) * 0.05)(D, F)),
            "w_down": _w((lambda *s: torch.randn(*s, dtype=torch.bfloat16) * 0.05)(F, D)),
        }
    _B_in = _B_setup()

    return {
        "A_x": _A_in["x"],
        "A_wqkv": _A_in["wqkv"],
        "A_wo": _A_in["wo"],
        "B_x": _B_in["x"],
        "B_w_gate": _B_in["w_gate"],
        "B_w_up": _B_in["w_up"],
        "B_w_down": _B_in["w_down"],
    }

def reference(A_x, A_wqkv, A_wo, B_x, B_w_gate, B_w_up, B_w_down):
    def _A_ref(x, wqkv, wo):
        B, S, D = x.shape
        H = 32; Dh = D // H
        W, dil = 8, 2
        qkv = (lambda x, *d: x.permute(*d))((x @ wqkv).reshape(B, S, 3, H, Dh), 2, 0, 3, 1, 4)
        q, k, v = qkv[0], qkv[1], qkv[2]
        scale = Dh ** -0.5
        pos = torch.arange(S)
        off = torch.arange(W) * dil
        idx = pos[:, None] - off[None, :]
        mask = idx >= 0
        idx_c = torch.where(mask, idx, 0).reshape(-1)
        kg = k[:, :, idx_c, :].reshape(B, H, S, W, Dh)
        vg = v[:, :, idx_c, :].reshape(B, H, S, W, Dh)
        logits = torch.einsum("bhsd,bhswd->bhsw", q, kg) * scale
        logits = torch.where(mask[None, None, :, :], logits, -1e9)
        attn = _softmax(logits, axis=-1)
        o = torch.einsum("bhsw,bhswd->bhsd", attn, vg)
        return (lambda x, *d: x.permute(*d))(o, 0, 2, 1, 3).reshape(B, S, D) @ wo

    def _B_ref(x, w_gate, w_up, w_down):
        g = _silu(x @ w_gate)
        u = x @ w_up
        return (g * u) @ w_down

    x = A_x
    xn = _layernorm(x, axis=-1)
    s = _A_ref(xn, A_wqkv, A_wo)
    g = _silu(_B_ref(xn, B_w_gate, B_w_up, B_w_down))
    return x + s * g
```

```python
class Asm:
    def __init__(self):
        self.lines = []
        self.n = 0
    def __call__(self, s):
        for l in s.strip("\n").split("\n"):
            self.lines.append("    " + l.strip() if not l.strip().endswith(":") else l.strip())
    def label(self, name): self.lines.append(name + ":")
    def raw(self, s): self.lines.append(s)
    def text(self): return "\n".join(self.lines) + "\n"

def vr(base, n=1, kind="v"):
    return f"{kind}{base}" if n == 1 else f"{kind}[{base}:{base+n-1}]"
def ar(base, n=1): return vr(base, n, "a")
def sr(base, n=1): return vr(base, n, "s")

def kernel_header(a, name):
    a.raw(f".globl {name}")
    a.raw(".p2align 8")
    a.raw(f".type {name},@function")
    a.label(name)

def kernel_desc(name, vgpr, sgpr, accum):
    return f""".p2align 6
.amdhsa_kernel {name}
  .amdhsa_next_free_vgpr {vgpr}
  .amdhsa_next_free_sgpr {sgpr}
  .amdhsa_accum_offset {accum}
  .amdhsa_group_segment_fixed_size 0
  .amdhsa_kernarg_size 80
  .amdhsa_user_sgpr_count 2
  .amdhsa_user_sgpr_kernarg_segment_ptr 1
  .amdhsa_system_sgpr_workgroup_id_x 1
  .amdhsa_float_denorm_mode_32 3
  .amdhsa_float_denorm_mode_16_64 3
.end_amdhsa_kernel
"""
```

```python
import sys
from asmgen import *
from k_ln import gen_ln
from k_g1 import gen_g1
HDR = open("recurrent_scan__sliding_local_dilated__swiglu_ffn__prompt.s.ref").read().split("; Override launch")[0]
def make(kernels, path):
    a = Asm()
    out = HDR
    for name, f, kw, grid, block, lds in kernels:
        out += f"; @launch kernel={name} grid=({grid},1,1) block=({block},1,1) lds={lds}\n"
    out += '.amdgcn_target "amdgcn-amd-amdhsa--gfx950"\n.text\n'
    descs = []
    seen = set()
    for name, f, kw, grid, block, lds in kernels:
        if name in seen: continue
        seen.add(name)
        descs.append(f(a, name=name, **kw))
    out += a.text()
    out += "code_end:\n    s_endpgm\n"
    out += '.section .rodata,"a"\n' + "".join(descs)
    open(path, "w").write(out)
if __name__ == "__main__":
    make([("ln_kernel", gen_ln, {}, 256, 256, 256),
          ("g1_kernel", gen_g1, dict(stamp=True), 256, 256, 102400)], "t1.s")
```

```python
from asmgen import *
from k_ln import WS_XN, WS_HO, HO_BYTES, WS_DBG
import struct
def f2u(x): return struct.unpack("<I", struct.pack("<f", x))[0]

STAGE = 20480
NBUF = 5
A_QKV = 0
A_HALO = 96
A_X = 112
A_W = 192
V_GU = 32

def acc_reg(t, b):
    if t < 6:
        if b < 0: return ar(A_HALO + (t - 2) * 4, 4)
        return ar(A_QKV + (t * 4 + b) * 4, 4)
    return vr(V_GU + ((t - 6) * 4 + b) * 4, 4)
def gu_base(t, b): return V_GU + ((t - 6) * 4 + b) * 4
def x_reg(u, b): return ar(A_X + (u * 5 + (b + 1)) * 4, 4)

def blk_read(t):
    if t < 6:
        r = (t >> 1) * 2; return (12 + (t & 1), r * 1024, (r + 1) * 1024)
    base = 6 if t < 13 else 13
    tt = t - base
    if tt == 6:
        r = base + 6; return (14, r * 1024, r * 1024 + 512)
    r = base + (tt >> 1) * 2
    return (12 + (tt & 1), r * 1024, (r + 1) * 1024)

def gen_g1(a, name="g1_kernel", stamp=False, no_dma=False, no_x=False, no_tr=False, no_bar=False,
           no_epi=False, ring=5, la=4, mimic=False):
    RING = ring; LA = la
    assert 20 % RING == 0 and LA < RING
    def w_reg(t): return A_W + (t % RING) * 4
    kernel_header(a, name)
    a(f"""
    s_cmp_ge_u32 s2, 256
    s_cbranch_scc1 {name}_done
    """)
    if stamp:
        a("s_memtime s[52:53]")
        a("s_memrealtime s[68:69]")
    a(f"""
    s_load_dwordx2 s[60:61], s[0:1], 8
    s_load_dwordx4 s[64:67], s[0:1], 32
    s_load_dwordx2 s[62:63], s[0:1], 72
    v_lshrrev_b32 v15, 6, v0
    v_and_b32 v1, 63, v0
    v_readfirstlane_b32 s3, v15
    s_and_b32 s5, s2, 7
    s_lshl_b32 s5, s5, 2
    s_bfe_u32 s4, s2, 0x20003
    s_add_u32 s5, s5, s4
    s_lshr_b32 s4, s2, 5                ; m
    s_lshl_b32 s6, s4, 4
    s_lshl_b32 s7, s3, 2
    s_add_u32 s6, s6, s7                ; tb0 = m*16 + 4w
    s_mul_i32 s46, s3, 5120
    v_lshrrev_b32 v16, 4, v1            ; lane>>4
    v_bfe_u32 v17, v1, 2, 2             ; (lane>>2)&3
    v_lshl_add_u32 v17, v16, 3, v17
    v_and_b32 v18, 1, v16
    v_lshlrev_b32 v18, 1, v18
    v_and_b32 v19, 3, v1
    v_xor_b32 v18, v18, v19             ; chunk_pair
    v_lshlrev_b32 v18, 4, v18
    v_mul_u32_u24 v20, 6144, v17
    v_add_u32 v20, v20, v18             ; pairQ
    v_mul_u32_u24 v21, 7168, v17
    v_add_u32 v21, v21, v18             ; pairG
    v_bfe_u32 v17, v1, 3, 2
    v_lshlrev_b32 v17, 3, v17
    v_bfe_u32 v18, v1, 1, 2             ; rho&3
    v_add_u32 v17, v17, v18
    v_lshrrev_b32 v18, 5, v1
    v_lshl_add_u32 v17, v18, 2, v17     ; krow_single
    v_mul_u32_u24 v22, 7168, v17
    v_and_b32 v18, 1, v1
    v_lshl_add_u32 v22, v18, 4, v22     ; singleG
    ; x voffsets
    s_lshl_b32 s7, s6, 10
    v_lshl_add_u32 v7, v1, 4, s7
    s_max_u32 s7, s6, 1
    s_sub_u32 s7, s7, 1
    s_lshl_b32 s7, s7, 10
    v_lshl_add_u32 v8, v1, 4, s7
    v_lshlrev_b32 v9, 8, v16
    v_bfe_u32 v17, v1, 2, 2
    v_lshl_add_u32 v9, v17, 6, v9
    v_lshl_add_u32 v9, v19, 3, v9
    v_and_b32 v17, 1, v16
    v_lshl_add_u32 v9, v17, 5, v9       ; hb=0
    v_xor_b32 v10, 32, v9               ; hb=1
    v_lshlrev_b32 v11, 3, v1            ; single
    v_mov_b32 v12, v9
    v_mov_b32 v13, v10
    v_mov_b32 v14, v11
    s_lshl_b32 s72, s5, 6               ; qkv: j*64
    s_and_b32 s73, s5, 1
    s_mul_i32 s74, s5, 7
    s_add_u32 s75, s74, s73
    s_lshl_b32 s75, s75, 5
    s_xor_b32 s73, s73, 1
    s_mul_i32 s73, s73, 6
    s_add_u32 s76, s74, s73
    s_lshl_b32 s76, s76, 5
    s_waitcnt lgkmcnt(0)
    s_mov_b32 s8, s62
    s_mov_b32 s9, s63
    s_mov_b32 s10, 0x400000
    s_mov_b32 s11, 0x20000
    s_add_u32 s48, s62, {WS_HO}
    s_addc_u32 s49, s63, 0
    s_mov_b32 s50, {HO_BYTES}
    s_mov_b32 s51, 0x20000
    """)
    for w in range(1, 4):
        a(f"s_cmp_eq_u32 s3, {w}")
        a(f"s_cbranch_scc1 {name}_setup{w}")
    for w in range(4):
        a.label(f"{name}_setup{w}")
        for i in range(5):
            r = 5 * w + i
            srd = 12 + 4 * i
            if r < 6:
                ptr, stride, pat = 60, 6144, 20
                a(f"s_add_u32 s{32+i}, s72, {(r >> 1) * 2048 + (r & 1) * 4 * stride}")
            else:
                ptr = 64 if r < 13 else 66
                stride = 7168
                rr = r - (6 if r < 13 else 13)
                if rr == 6:
                    pat = 22
                    a(f"s_mov_b32 s{32+i}, s76")
                else:
                    pat = 21
                    a(f"s_add_u32 s{32+i}, s75, {(rr >> 1) * 64 + (rr & 1) * 4 * stride}")
            a(f"s_mov_b32 s{srd}, s{ptr}")
            a(f"s_mov_b32 s{srd+1}, s{ptr+1}")
            a(f"s_mov_b32 s{srd+2}, {1024 * stride}")
            a(f"s_mov_b32 s{srd+3}, 0x20000")
            a(f"s_mov_b32 s{37+i}, {32 * stride}")
            a(f"v_mov_b32 v{2+i}, v{pat}")
        if w < 3: a(f"s_branch {name}_setup_done")
    a.label(f"{name}_setup_done")

    def dma(i): return f"buffer_load_dwordx4 v{2+i}, s[{12+4*i}:{15+4*i}], s{32+i} offen lds"
    def xload(u, b):
        if b < 0: return f"buffer_load_dwordx4 {x_reg(u, b)}, v8, s[8:11], s42 offen"
        return f"buffer_load_dwordx4 {x_reg(u, b)}, v7, s[8:11], s42 offen offset:{b*1024}"
    def trread(t, p):
        v, o0, o1 = blk_read(t)
        return f"ds_read_b64_tr_b16 {ar(w_reg(t) + 2 * p, 2)}, v{v} offset:{o1 if p else o0}"

    a("s_mov_b32 s42, 0")
    a("s_add_u32 s47, s46, %d" % (NBUF * STAGE))
    for st in range(4):
        for i in range(5 if st < 3 else 2):
            a(f"s_add_u32 m0, s46, {st * STAGE + i * 1024}")
            a("s_nop 0")
            a(dma(i))
            a(f"s_add_u32 s{32+i}, s{32+i}, s{37+i}")
        if st < 3:
            for b in range(-1, 4): a(xload(st, b))
            a("s_add_u32 s42, s42, 0x20000")
    a(f"s_add_u32 s44, s46, {3 * STAGE}")
    a("s_mov_b32 s43, 0")
    for r in range(A_HALO + 16): a(f"v_accvgpr_write_b32 a{r}, 0")
    for r in range(V_GU, 256): a(f"v_mov_b32 v{r}, 0")
    a("s_mov_b32 s45, 8")
    a("s_waitcnt vmcnt(22)")
    a("s_barrier")
    for t in range(LA):
        a(trread(t, 0)); a(trread(t, 1))
    if stamp: a("s_memtime s[54:55]"); a("s_memrealtime s[98:99]"); a("s_waitcnt lgkmcnt(0)")
    a.raw(".p2align 6")
    a.label(f"{name}_loop")
    BAR_T = 20 - LA
    for u in range(4):
        dma_at = {BAR_T: 0, BAR_T + 2: 1, 0: 2, 2: 3, 4: 4}
        x_at = {6: -1, 8: 0, 10: 1, 12: 2, 14: 3}
        for t in range(20):
            bs = [0, 1, 2, 3] + ([-1] if 2 <= t < 6 else [])
            fill = {i: [] for i in range(len(bs))}
            tn = (t + LA) % 20
            if t == BAR_T and not no_bar:
                fill[0] += ["s_waitcnt vmcnt(20)", "s_barrier"]
            if not no_tr:
                fill[0].append(trread(tn, 0))
                fill[1].append(trread(tn, 1))
            if t in dma_at and not no_dma:
                i = dma_at[t]
                fill[1].append(f"s_add_u32 m0, s44, {i * 1024}")
                fill[2].append(dma(i))
                fill[3].append(f"s_add_u32 s{32+i}, s{32+i}, s{37+i}")
            if t in x_at and not no_x:
                fill[2].append(xload((u + 3) % 4, x_at[t]))
            if t == 15 and not no_x: pass
            if t == 7:
                fill[2] += [f"s_add_u32 s43, s43, {STAGE}", f"s_cmp_ge_u32 s43, {NBUF*STAGE}"]
                fill[3] += ["s_cselect_b32 s43, 0, s43"]
            if t == 9:
                fill[2] += [f"s_add_u32 s44, s44, {STAGE}", "s_cmp_ge_u32 s44, s47"]
                fill[3] += ["s_cselect_b32 s44, s46, s44"]
            if t == BAR_T - 1:
                fill[2] += ["v_add_u32 v12, s43, v9", "v_add_u32 v13, s43, v10"]
                fill[3] += ["v_add_u32 v14, s43, v11"]
            if t == 17:
                fill[2] += ["s_add_u32 s42, s42, 0x20000"]
            if t == 19 and u == 3:
                fill[2] += ["s_sub_u32 s45, s45, 1"]
                fill[3] += ["s_cmp_lg_u32 s45, 0"]
            if not no_tr: a(f"s_waitcnt lgkmcnt({2 * (LA - 1)})")
            for i, b in enumerate(bs):
                w = ar(w_reg(t), 4); x = x_reg(u, b); c = acc_reg(t, b)
                if t in (4, 5): a(f"v_mfma_f32_16x16x32_bf16 {c}, {x}, {w}, {c}")
                else: a(f"v_mfma_f32_16x16x32_bf16 {c}, {w}, {x}, {c}")
                for f in fill[i]: a(f)
    a(f"s_cbranch_scc1 {name}_loop")
    if stamp: a("s_memtime s[56:57]"); a("s_memrealtime s[100:101]"); a("s_waitcnt lgkmcnt(0)")
    a("s_nop 7")
    if not no_epi: epilogue(a, name, mimic)
    if stamp:
        a("s_waitcnt vmcnt(0)")
        a("s_memtime s[58:59]")
        a("s_memrealtime s[70:71]")
        a(f"""
        s_waitcnt lgkmcnt(0)
        s_add_u32 s8, s62, {WS_DBG}
        s_addc_u32 s9, s63, 0
        s_mov_b32 s10, 0x100000
        s_mov_b32 s11, 0x20000
        s_lshl_b32 s7, s2, 2
        s_add_u32 s7, s7, s3
        s_lshl_b32 s7, s7, 6
        v_mov_b32 v1, 0
        s_getreg_b32 s72, hwreg(HW_REG_XCC_ID)
        """)
        for k, s in enumerate([52, 53, 54, 55, 56, 57, 58, 59, 68, 69, 70, 71, 72, 98, 100]):
            a(f"v_mov_b32 v16, s{s}")
            a(f"buffer_store_dword v16, v1, s[8:11], s7 offen offset:{4*k}")
    a.label(f"{name}_done")
    a("s_endpgm")
    return kernel_desc(name, 512, 102, 256)

def epilogue(a, name, mimic):
    a(f"""
    s_mov_b32 s76, {f2u(-1.4426950408889634):#x}
    s_mov_b32 s77, s76
    s_mov_b32 s78, 1.0
    s_mov_b32 s79, 1.0
    s_lshr_b32 s75, s75, 6
    s_lshl_b32 s75, s75, 17
    s_and_b32 s73, s5, 1
    s_mul_i32 s74, s5, 7
    s_xor_b32 s72, s73, 1
    s_mul_i32 s72, s72, 6
    s_add_u32 s74, s74, s72
    s_lshr_b32 s74, s74, 1
    s_lshl_b32 s74, s74, 17
    s_lshl_b32 s73, s73, 3
    s_add_u32 s74, s74, s73
    """)
    def silu_blocks(blks, outs):
        for G, U in blks:
            for h in (0, 2):
                a(f"v_pk_mul_f32 v[{U+h}:{U+h+1}], v[{G+h}:{G+h+1}], v[{U+h}:{U+h+1}]")
                a(f"v_pk_mul_f32 v[{G+h}:{G+h+1}], v[{G+h}:{G+h+1}], s[76:77]")
        for G, U in blks:
            for r in range(4): a(f"v_exp_f32 v{G+r}, v{G+r}")
        a("s_nop 0")
        for G, U in blks:
            for h in (0, 2): a(f"v_pk_add_f32 v[{G+h}:{G+h+1}], v[{G+h}:{G+h+1}], s[78:79]")
        for G, U in blks:
            for r in range(4): a(f"v_rcp_f32 v{G+r}, v{G+r}")
        a("s_nop 0")
        for G, U in blks:
            for h in (0, 2): a(f"v_pk_mul_f32 v[{G+h}:{G+h+1}], v[{G+h}:{G+h+1}], v[{U+h}:{U+h+1}]")
        for (G, U), O in zip(blks, outs):
            a(f"v_cvt_pk_bf16_f32 v{O}, v{G}, v{G+1}")
            a(f"v_cvt_pk_bf16_f32 v{O+1}, v{G+2}, v{G+3}")
    k = 0
    for i in range(3):
        for b in range(4):
            O = 16 + 4 * (k % 4); k += 1
            silu_blocks([(gu_base(6 + 2 * i, b), gu_base(13 + 2 * i, b)),
                         (gu_base(7 + 2 * i, b), gu_base(14 + 2 * i, b))], [O, O + 2])
            a(f"buffer_store_dwordx4 v[{O}:{O+3}], v7, s[48:51], s75 offen offset:{b*1024}")
        a("s_add_u32 s75, s75, 0x20000")
    for b0 in (0, 2):
        O = 16 + 4 * (k % 4); k += 1
        silu_blocks([(gu_base(12, b0), gu_base(19, b0)), (gu_base(12, b0 + 1), gu_base(19, b0 + 1))], [O, O + 2])
        a(f"buffer_store_dwordx2 v[{O}:{O+1}], v7, s[48:51], s74 offen offset:{b0*1024}")
        a(f"buffer_store_dwordx2 v[{O+2}:{O+3}], v7, s[48:51], s74 offen offset:{(b0+1)*1024}")
    a("""
    v_and_b32 v32, 15, v1
    v_lshrrev_b32 v33, 4, v1
    v_lshlrev_b32 v33, 2, v33
    v_sub_u32 v32, v32, v33             ; j - 4g
    """)
    MP, MC, M0P = 72, 80, 88
    for r in range(4):
        for base, add in ((MP, 16), (MC, 0)):
            a(f"v_add_u32 v33, {add - r}, v32")
            a(f"v_and_b32 v33, 0xfffffff1, v33")
            a(f"v_cmp_eq_u32 s[{base+2*r}:{base+2*r+1}], 0, v33")
    a("s_nop 1")
    a("s_cmp_eq_u32 s6, 0")
    for r in range(4):
        a(f"s_cselect_b64 s[{M0P+2*r}:{M0P+2*r+1}], 0, s[{MP+2*r}:{MP+2*r+1}]")
    QF, KF, V0, V1 = 40, 56, 76, 86
    T = 100
    def areg(t, b):
        if b < 0: return A_HALO + (t - 2) * 4
        return A_QKV + (t * 4 + b) * 4
    def pack(dst, t, b, tmp):
        for r in range(4): a(f"v_accvgpr_read_b32 v{tmp+r}, a{areg(t, b)+r}")
        a(f"v_cvt_pk_bf16_f32 v{dst}, v{tmp}, v{tmp+1}")
        a(f"v_cvt_pk_bf16_f32 v{dst+1}, v{tmp+2}, v{tmp+3}")
    k = 0
    for b in range(-1, 4):
        if b >= 0:
            for h in range(2): pack(QF + 4 * b + 2 * h, h, b, T + 4 * (k % 4)); k += 1
        for h in range(2): pack(KF + 4 * (b + 1) + 2 * h, 2 + h, b, T + 4 * (k % 4)); k += 1
        pack(V0 + 2 * (b + 1), 4, b, T + 4 * (k % 4)); k += 1
        pack(V1 + 2 * (b + 1), 5, b, T + 4 * (k % 4)); k += 1
    S = 120
    a("s_nop 1")
    for b in range(4):
        a(f"v_mfma_f32_16x16x32_bf16 v[{S+8*b}:{S+8*b+3}], v[{KF+4*b}:{KF+4*b+3}], v[{QF+4*b}:{QF+4*b+3}], 0")
        a(f"v_mfma_f32_16x16x32_bf16 v[{S+8*b+4}:{S+8*b+7}], v[{KF+4*b+4}:{KF+4*b+7}], v[{QF+4*b}:{QF+4*b+3}], 0")
    a("v_mov_b32 v34, 0xff800000")
    c = 0.17677669529663687 * 1.4426950408889634
    a(f"s_mov_b32 s96, {f2u(c if not mimic else 1.4426950408889634):#x}")
    a(f"s_mov_b32 s97, {f2u(0.1767578125):#x}")
    a("s_nop 7")
    if mimic:
        a(f"s_mov_b32 s97, {f2u(0.17677669529663687):#x}")
        for rnd in range(2):
            for i in range(0, 32, 2):
                a(f"v_cvt_pk_bf16_f32 v{S+i+1}, v{S+i}, v{S+i+1}")
                a(f"v_lshlrev_b32 v{S+i}, 16, v{S+i+1}")
                a(f"v_and_b32 v{S+i+1}, 0xffff0000, v{S+i+1}")
                if rnd == 0:
                    a(f"v_mul_f32 v{S+i}, s97, v{S+i}")
                    a(f"v_mul_f32 v{S+i+1}, s97, v{S+i+1}")
    for b in range(4):
        for r in range(4):
            mp = (M0P if b == 0 else MP) + 2 * r
            a(f"v_cndmask_b32 v{S+8*b+r}, v34, v{S+8*b+r}, s[{mp}:{mp+1}]")
            a(f"v_cndmask_b32 v{S+8*b+4+r}, v34, v{S+8*b+4+r}, s[{MC+2*r}:{MC+2*r+1}]")
    MX, TT = 152, 156
    for b in range(4):
        s = S + 8 * b
        a(f"v_max3_f32 v{MX+b}, v{s}, v{s+1}, v{s+2}")
        a(f"v_max3_f32 v{TT+b}, v{s+3}, v{s+4}, v{s+5}")
    for b in range(4):
        s = S + 8 * b
        a(f"v_max3_f32 v{MX+b}, v{MX+b}, v{s+6}, v{s+7}")
    for b in range(4): a(f"v_max_f32 v{MX+b}, v{MX+b}, v{TT+b}")
    def allred(op):
        for sw in ("v_permlane16_swap_b32", "v_permlane32_swap_b32"):
            for b in range(4): a(f"v_mov_b32 v{TT+b}, v{MX+b}")
            a("s_nop 1")
            for b in range(4): a(f"{sw} v{MX+b}, v{TT+b}")
            a("s_nop 1")
            for b in range(4): a(f"{op} v{MX+b}, v{MX+b}, v{TT+b}")
    allred("v_max_f32")
    for b in range(4): a(f"v_mul_f32 v{MX+b}, s96, v{MX+b}")
    for b in range(4):
        for r in range(8): a(f"v_fma_f32 v{S+8*b+r}, v{S+8*b+r}, s96, -v{MX+b}")
    for i in range(32): a(f"v_exp_f32 v{S+i}, v{S+i}")
    a("s_nop 0")
    for b in range(4):
        s = S + 8 * b
        a(f"v_add_f32 v{MX+b}, v{s}, v{s+1}")
        a(f"v_add_f32 v{TT+b}, v{s+2}, v{s+3}")
    for r in (4, 6):
        for b in range(4):
            s = S + 8 * b
            a(f"v_add_f32 v{MX+b}, v{MX+b}, v{s+r}")
            a(f"v_add_f32 v{TT+b}, v{TT+b}, v{s+r+1}")
    for b in range(4): a(f"v_add_f32 v{MX+b}, v{MX+b}, v{TT+b}")
    allred("v_add_f32")
    for b in range(4): a(f"v_rcp_f32 v{MX+b}, v{MX+b}")
    a("s_nop 0")
    for b in range(4):
        for r in range(8): a(f"v_mul_f32 v{S+8*b+r}, v{S+8*b+r}, v{MX+b}")
    P = 160
    for b in range(4):
        for r in range(4): a(f"v_cvt_pk_bf16_f32 v{P+4*b+r}, v{S+8*b+2*r}, v{S+8*b+2*r+1}")
    O = 176
    a("s_nop 1")
    for b in range(4):
        a(f"v_mfma_f32_16x16x32_bf16 v[{O+8*b}:{O+8*b+3}], v[{V0+2*b}:{V0+2*b+3}], v[{P+4*b}:{P+4*b+3}], 0")
        a(f"v_mfma_f32_16x16x32_bf16 v[{O+8*b+4}:{O+8*b+7}], v[{V1+2*b}:{V1+2*b+3}], v[{P+4*b}:{P+4*b+3}], 0")
    a("s_add_u32 s75, s5, 112")
    a("s_lshl_b32 s75, s75, 17")
    a("s_nop 7")
    OP = 208
    for b in range(4):
        for r in range(4): a(f"v_cvt_pk_bf16_f32 v{OP+4*b+r}, v{O+8*b+2*r}, v{O+8*b+2*r+1}")
        a(f"buffer_store_dwordx4 v[{OP+4*b}:{OP+4*b+3}], v7, s[48:51], s75 offen offset:{b*1024}")
```

```python
from asmgen import *
from sched import *
from k_ln import WS_XN, WS_HO, HO_BYTES, WS_DBG
from k_g1 import f2u

def gen_g2(a, name="g2_kernel", stamp=False, nbuf=6, xr=8, LA=6):
    NB = 4; RING = 8
    STG = 2 * 2 * (NB // 2) * 1024
    NBUF = nbuf
    XR = xr
    V_F, V_S = 32, 64
    A_X = 0
    A_W = XR * 8
    NA = A_W + RING * 4
    def x_reg(s, b): return ar(A_X + ((s % XR) * 2 + b) * 4, 4)
    def w_reg(tau): return A_W + (tau % RING) * 4
    kernel_header(a, name)
    a(f"""
    s_cmp_ge_u32 s2, 256
    s_cbranch_scc1 {name}_done
    """)
    if stamp:
        a("s_memtime s[52:53]"); a("s_memrealtime s[68:69]")
    a(f"""
    s_load_dwordx2 s[60:61], s[0:1], 48     ; w_down
    s_load_dwordx2 s[62:63], s[0:1], 72     ; ws
    s_load_dwordx2 s[64:65], s[0:1], 16     ; wo
    s_load_dwordx2 s[66:67], s[0:1], 0      ; x
    s_load_dwordx2 s[72:73], s[0:1], 56     ; out
    v_lshrrev_b32 v15, 6, v0
    v_and_b32 v1, 63, v0
    v_readfirstlane_b32 s3, v15
    s_bfe_u32 s4, s2, 0x20001
    s_lshl_b32 s4, s4, 2
    s_bfe_u32 s5, s2, 0x20003
    s_add_u32 s4, s4, s5                ; m
    s_and_b32 s5, s2, 1
    s_lshl_b32 s5, s5, 3
    s_lshr_b32 s6, s2, 5
    s_add_u32 s5, s5, s6                ; n tile
    s_lshl_b32 s6, s4, 3
    s_lshl_b32 s7, s3, 1
    s_add_u32 s6, s6, s7                ; tb0 = m*8 + 2w
    v_lshrrev_b32 v16, 4, v1
    v_and_b32 v18, 1, v16
    v_lshlrev_b32 v18, 1, v18
    v_and_b32 v19, 3, v1
    v_xor_b32 v18, v18, v19
    v_lshlrev_b32 v18, 4, v18
    v_lshrrev_b32 v17, 2, v1
    v_lshl_add_u32 v2, v17, 11, v18
    s_lshl_b32 s7, s6, 10
    v_lshl_add_u32 v7, v1, 4, s7
    v_lshlrev_b32 v9, 8, v16
    v_bfe_u32 v17, v1, 2, 2
    v_lshl_add_u32 v9, v17, 6, v9
    v_lshl_add_u32 v9, v19, 3, v9
    v_and_b32 v17, 1, v16
    v_lshl_add_u32 v9, v17, 5, v9
    v_xor_b32 v10, 32, v9
    v_mov_b32 v12, v9
    v_mov_b32 v13, v10
    s_lshl_b32 s33, s5, 7
    s_lshl_b32 s7, s3, 15
    s_add_u32 s33, s33, s7
    s_mov_b32 s32, s33
    s_mul_i32 s46, s3, {(NB//2)*1024}
    s_add_u32 s47, s46, {NBUF*STG}
    s_mov_b32 s42, 0
    s_waitcnt lgkmcnt(0)
    s_add_u32 s8, s62, {WS_HO}
    s_addc_u32 s9, s63, 0
    s_mov_b32 s10, {HO_BYTES}
    s_mov_b32 s11, 0x20000
    s_mov_b32 s12, s60
    s_mov_b32 s13, s61
    s_mov_b32 s14, {3584*2048}
    s_mov_b32 s15, 0x20000
    """)
    NSTEP_F, NSTEP_S = 112, 32
    NSTEP = NSTEP_F + NSTEP_S
    NSTG = NSTEP // 2
    def dma(q, sg):
        return [f"s_add_u32 m0, s44, {q*1024 - q*64}", VM(f"buffer_load_dwordx4 v2, s[12:15], s32 offen offset:{q*64} lds", ("W", sg))]
    def xload(s, b): return VM(f"buffer_load_dwordx4 {x_reg(s, b)}, v7, s[8:11], s42 offen offset:{b*1024}", ("X", s))
    def trread(tau, p):
        kk = (tau // NB) % 2; t = tau % NB
        off = ((kk * 2 + p) * (NB // 2) + (t >> 1)) * 1024
        return f"ds_read_b64_tr_b16 {ar(w_reg(tau) + 2*p, 2)}, v{12 + (t & 1)} offset:{off}"
    wadv = ["s_add_u32 s32, s32, 0x20000", f"s_add_u32 s44, s44, {STG}", "s_cmp_ge_u32 s44, s47", "s_cselect_b32 s44, s46, s44"]
    switch = ["s_mov_b32 s12, s64", "s_mov_b32 s13, s65", f"s_mov_b32 s14, {1024*2048}", "s_mov_b32 s32, s33"]
    tr = Trace()
    pro = ["s_mov_b32 s44, s46"]
    for sg in range(NBUF - 1):
        for q in range(NB // 2):
            d = dma(q, sg); pro += [d[0], "s_nop 0", d[1]]
        pro += wadv
        for s in (2 * sg, 2 * sg + 1):
            if s < XR - 1:
                pro += [xload(s, 0), xload(s, 1), "s_add_u32 s42, s42, 0x20000"]
    assert 2 * (NBUF - 1) >= XR - 1
    for r in range(V_F, V_S + 32): pro.append(f"v_mov_b32 v{r}, 0")
    pro += ["s_mov_b32 s43, 0", VW([("W", 0)]), "s_barrier"]
    for tau in range(LA): pro += [trread(tau, 0), trread(tau, 1)]
    tr.add("pro", pro)
    BPS = 2 * NB
    BAR = BPS - LA
    def body(s0, accb, sw_at, last):
        R = []
        for s in range(s0, s0 + XR):
            sg = s // 2
            for t in range(NB):
                tau = s * NB + t
                bi = tau % BPS
                fill = [[], []]
                wsg = sg + NBUF - 1
                if bi == BAR:
                    fill[0] += [VW([("W", sg + 1)]), "s_barrier"]
                fill[0].append(trread(tau + LA, 0))
                fill[1].append(trread(tau + LA, 1))
                if bi == BAR - 1:
                    fill[1] += ["v_add_u32 v12, s43, v9", "v_add_u32 v13, s43, v10"]
                if bi == (BAR - 2) % BPS:
                    fill[0] += [f"s_add_u32 s43, s43, {STG}", f"s_cmp_ge_u32 s43, {NBUF*STG}", "s_cselect_b32 s43, 0, s43"]
                if not last:
                    if bi == BAR and wsg == sw_at: fill[1] += switch
                    for q in range(NB // 2):
                        if bi == BAR + 1 + 2 * q:
                            d = dma(q, wsg); fill[0].append(d[0]); fill[1].append(d[1])
                    if bi == BAR + 1 + 2 * (NB // 2 - 1) + 1: fill[0] += wadv
                    if t == 0: fill[1].append(xload(s + XR - 1, 0))
                    if t == 2: fill[1] += [xload(s + XR - 1, 1), "s_add_u32 s42, s42, 0x20000"]
                elif s == s0:
                    if t == 0: fill[1].append(xload(s + XR - 1, 0))
                    if t == 2: fill[1].append(xload(s + XR - 1, 1))
                if t == 0: R.append(VW([("X", s)], f"lgkmcnt({2*(LA-2)})"))
                elif tau % 2 == 0: R.append(f"s_waitcnt lgkmcnt({2*(LA-2)})")
                for i in range(2):
                    b = i if t % 2 == 0 else 1 - i
                    c = vr(accb + (t * 2 + b) * 4, 4)
                    R.append(f"v_mfma_f32_16x16x32_bf16 {c}, {ar(w_reg(tau), 4)}, {x_reg(s, b)}, {c}")
                    R += fill[i]
        return R
    assert BAR >= 2 and BAR + 1 + 2 * (NB // 2 - 1) + 1 < BPS
    nit = NSTEP // XR; nf = NSTEP_F // XR
    SW = NSTEP_F // 2
    seq = []
    for it in range(nit):
        s0 = it * XR
        stages = range(s0 // 2 + NBUF - 1, (s0 + XR) // 2 + NBUF - 1)
        has_sw = SW in stages
        last = it == nit - 1
        ph = "f" if it < nf else "s"
        sid = ph + ("sw" if has_sw else "") + ("last" if last else "")
        if seq and seq[-1][0].split("#")[0] == sid: sid = seq[-1][0]
        else: sid = sid + f"#{len(seq)}"
        seq.append((sid, it))
        tr.add(sid, body(s0, V_F if ph == "f" else V_S, SW if has_sw else None, last))
    res = tr.resolve()
    for l in res["pro"]: a(l)
    if stamp: a("s_memtime s[54:55]"); a("s_memrealtime s[98:99]"); a("s_waitcnt lgkmcnt(0)")
    done = set()
    for sid, it in seq:
        if sid in done: continue
        done.add(sid)
        cnt = sum(1 for x, _ in seq if x == sid)
        lab = f"{name}_L{len(done)}"
        if "last" in sid:
            a(f"""
            s_mov_b32 s16, s66
            s_mov_b32 s17, s67
            s_mov_b32 s18, 0x400000
            s_mov_b32 s19, 0x20000
            s_mov_b32 s20, s72
            s_mov_b32 s21, s73
            s_mov_b32 s22, 0x400000
            s_mov_b32 s23, 0x20000
            v_and_b32 v16, 15, v1
            v_lshlrev_b32 v16, 11, v16
            v_bfe_u32 v17, v1, 4, 1
            v_lshl_add_u32 v16, v17, 5, v16
            v_lshrrev_b32 v17, 5, v1
            v_lshl_add_u32 v16, v17, 4, v16     ; j*2048 + (g&1)*32 + (g>>1)*16
            s_lshl_b32 s24, s6, 15
            s_lshl_b32 s25, s5, 7
            s_add_u32 s24, s24, s25
            s_add_u32 s25, s24, 0x8000
            """)
        if cnt > 1:
            a(f"s_mov_b32 s45, {cnt}")
            a.raw(".p2align 6")
            a.label(lab)
        for l in res[sid]: a(l)
        if cnt > 1:
            a("s_sub_u32 s45, s45, 1"); a("s_cmp_lg_u32 s45, 0"); a(f"s_cbranch_scc1 {lab}")
    if stamp: a("s_memtime s[56:57]"); a("s_memrealtime s[100:101]"); a("s_waitcnt lgkmcnt(0)")
    XV = 96
    for b in range(2):
        for tp in range(2):
            r = XV + (b * 2 + tp) * 4
            a(f"buffer_load_dwordx4 v[{r}:{r+3}], v16, s[16:19], s{24+b} offen offset:{tp*64}")
    a(f"s_mov_b32 s76, {f2u(-1.4426950408889634):#x}")
    a("s_nop 7")
    def rnd(lo, n):
        for i in range(lo, lo + n, 2):
            a(f"v_cvt_pk_bf16_f32 v{i+1}, v{i}, v{i+1}")
            a(f"v_lshlrev_b32 v{i}, 16, v{i+1}")
            a(f"v_and_b32 v{i+1}, 0xffff0000, v{i+1}")
    T = 112
    rnd(V_F, 32)
    for i in range(32): a(f"v_mul_f32 v{T+i}, s76, v{V_F+i}")
    for i in range(32): a(f"v_exp_f32 v{T+i}, v{T+i}")
    rnd(V_S, 32)
    for i in range(32): a(f"v_add_f32 v{T+i}, 1.0, v{T+i}")
    for i in range(32): a(f"v_rcp_f32 v{T+i}, v{T+i}")
    a("s_nop 0")
    for i in range(32): a(f"v_mul_f32 v{V_F+i}, v{V_F+i}, v{T+i}")
    rnd(V_F, 32)
    for i in range(32): a(f"v_mul_f32 v{V_F+i}, v{V_F+i}, v{V_S+i}")
    rnd(V_F, 32)
    a("s_waitcnt vmcnt(0)")
    for q in range(4):
        r = XV + q * 4
        a(f"v_permlane16_swap_b32 v{r}, v{r+2}")
        a(f"v_permlane16_swap_b32 v{r+1}, v{r+3}")
    a("s_nop 1")
    for b in range(2):
        for tp in range(2):
            r = XV + (b * 2 + tp) * 4
            for h in range(2):
                c = V_F + ((2 * tp + h) * 2 + b) * 4
                for e in range(2):
                    src = r + 2 * h + e
                    a(f"v_lshlrev_b32 v{T}, 16, v{src}")
                    a(f"v_and_b32 v{T+1}, 0xffff0000, v{src}")
                    a(f"v_add_f32 v{T}, v{T}, v{c+2*e}")
                    a(f"v_add_f32 v{T+1}, v{T+1}, v{c+2*e+1}")
                    a(f"v_cvt_pk_bf16_f32 v{src}, v{T}, v{T+1}")
            a("s_nop 1")
            a(f"v_permlane16_swap_b32 v{r}, v{r+2}")
            a(f"v_permlane16_swap_b32 v{r+1}, v{r+3}")
            a("s_nop 1")
            a(f"buffer_store_dwordx4 v[{r}:{r+3}], v16, s[20:23], s{24+b} offen offset:{tp*64}")
    if stamp:
        a("s_waitcnt vmcnt(0)")
        a("s_memtime s[58:59]")
        a("s_memrealtime s[70:71]")
        a(f"""
        s_waitcnt lgkmcnt(0)
        s_add_u32 s8, s62, {WS_DBG + 0x10000}
        s_addc_u32 s9, s63, 0
        s_mov_b32 s10, 0x100000
        s_mov_b32 s11, 0x20000
        s_lshl_b32 s7, s2, 2
        s_add_u32 s7, s7, s3
        s_lshl_b32 s7, s7, 6
        v_mov_b32 v1, 0
        s_getreg_b32 s72, hwreg(HW_REG_XCC_ID)
        """)
        for k, s in enumerate([52, 53, 54, 55, 56, 57, 58, 59, 68, 69, 70, 71, 72, 98, 100]):
            a(f"v_mov_b32 v16, s{s}")
            a(f"buffer_store_dword v16, v1, s[8:11], s7 offen offset:{4*k}")
    a.label(f"{name}_done")
    a("s_endpgm")
    return kernel_desc(name, 144 + NA, 102, 144), NBUF * STG
```

```python
from asmgen import *

WS_XN = 0
WS_HO = 4 << 20
HO_BYTES = 144 * 128 * 1024
WS_DBG = 64 << 20

def xred(a, v, t, op="v_add_f32"):
    a(f"s_nop 1")
    a(f"{op}_dpp {v}, {v}, {v} row_ror:8 row_mask:0xf bank_mask:0xf")
    a(f"v_mov_b32 {t}, {v}")
    a(f"s_nop 1")
    a(f"v_permlane16_swap_b32 {v}, {t}")
    a(f"{op} {v}, {v}, {t}")
    a(f"v_mov_b32 {t}, {v}")
    a(f"s_nop 1")
    a(f"v_permlane32_swap_b32 {v}, {t}")
    a(f"{op} {v}, {v}, {t}")

def gen_ln(a, name="ln_kernel"):
    kernel_header(a, name)
    a(f"""
    s_cmp_ge_u32 s2, 256
    s_cbranch_scc1 {name}_done
    s_load_dwordx2 s[4:5], s[0:1], 0
    s_load_dwordx2 s[6:7], s[0:1], 72
    v_and_b32 v1, 7, v0                 ; j
    v_bfe_u32 v2, v0, 3, 3              ; p
    v_lshrrev_b32 v3, 6, v0             ; w
    v_lshlrev_b32 v4, 11, v1            ; j*2048
    v_lshl_add_u32 v4, v3, 9, v4        ; + w*512
    v_lshl_add_u32 v4, v2, 4, v4        ; + p*16
    s_lshl_b32 s3, s2, 14               ; wg*16384
    s_waitcnt lgkmcnt(0)
    s_mov_b32 s8, s4
    s_mov_b32 s9, s5
    s_mov_b32 s10, 0x400000
    s_mov_b32 s11, 0x20000
    buffer_load_dwordx4 v[8:11], v4, s[8:11], s3 offen
    buffer_load_dwordx4 v[12:15], v4, s[8:11], s3 offen offset:128
    buffer_load_dwordx4 v[16:19], v4, s[8:11], s3 offen offset:256
    buffer_load_dwordx4 v[20:23], v4, s[8:11], s3 offen offset:384
    s_mov_b32 s12, s6
    s_mov_b32 s13, s7
    s_mov_b32 s14, 0x400000
    s_mov_b32 s15, 0x20000
    v_lshrrev_b32 v5, 2, v2
    v_lshl_add_u32 v5, v3, 3, v5
    v_lshlrev_b32 v5, 17, v5
    v_and_b32 v6, 3, v2
    v_lshl_add_u32 v5, v6, 8, v5
    v_lshl_add_u32 v5, v1, 4, v5
    s_lshr_b32 s16, s2, 1
    s_lshl_b32 s16, s16, 10
    s_and_b32 s17, s2, 1
    s_lshl_b32 s17, s17, 7
    s_add_u32 s16, s16, s17
    s_add_u32 s17, s16, 0x40000
    s_add_u32 s18, s16, 0x80000
    s_add_u32 s19, s16, 0xc0000
    v_lshlrev_b32 v6, 4, v1             ; j*16 (read)
    v_lshl_add_u32 v7, v3, 2, v6        ; j*16 + w*4 (write)
    """)
    for i in range(4):
        a(f"s_waitcnt vmcnt({3-i})")
        for r in range(4):
            src = 8 + 4 * i + r
            d = 24 + 2 * (4 * i + r)
            a(f"v_lshlrev_b32 v{d}, 16, v{src}")
            a(f"v_and_b32 v{d+1}, 0xffff0000, v{src}")
    a("v_pk_add_f32 v[56:57], v[24:25], v[26:27]")
    a("v_pk_add_f32 v[58:59], v[28:29], v[30:31]")
    for i in range(4, 16, 2):
        a(f"v_pk_add_f32 v[56:57], v[56:57], v[{24+2*i}:{25+2*i}]")
        a(f"v_pk_add_f32 v[58:59], v[58:59], v[{26+2*i}:{27+2*i}]")
    a("v_pk_add_f32 v[56:57], v[56:57], v[58:59]")
    a("v_add_f32 v56, v56, v57")
    xred(a, "v56", "v57")
    a("""
    ds_write_b32 v7, v56
    s_waitcnt lgkmcnt(0)
    s_barrier
    ds_read_b128 v[60:63], v6
    s_waitcnt lgkmcnt(0)
    v_add_f32 v60, v60, v61
    v_add_f32 v62, v62, v63
    v_add_f32 v60, v60, v62
    v_mul_f32 v60, 0x3a800000, v60
    v_mov_b32 v61, v60
    """)
    a("v_pk_add_f32 v[56:57], v[24:25], v[60:61] neg_lo:[0,1] neg_hi:[0,1]")
    a("v_pk_mul_f32 v[58:59], v[56:57], v[56:57]")
    a("v_pk_add_f32 v[56:57], v[26:27], v[60:61] neg_lo:[0,1] neg_hi:[0,1]")
    a("v_pk_mul_f32 v[62:63], v[56:57], v[56:57]")
    for i in range(2, 16):
        acc = "v[58:59]" if i % 2 == 0 else "v[62:63]"
        t = "v[56:57]" if i % 2 == 0 else "v[64:65]"
        a(f"v_pk_add_f32 {t}, v[{24+2*i}:{25+2*i}], v[60:61] neg_lo:[0,1] neg_hi:[0,1]")
        a(f"v_pk_fma_f32 {acc}, {t}, {t}, {acc}")
    a("v_pk_add_f32 v[58:59], v[58:59], v[62:63]")
    a("v_add_f32 v58, v58, v59")
    xred(a, "v58", "v59")
    a("""
    ds_write_b32 v7, v58 offset:128
    s_waitcnt lgkmcnt(0)
    s_barrier
    ds_read_b128 v[64:67], v6 offset:128
    v_cvt_pk_bf16_f32 v60, v60, v60
    v_lshlrev_b32 v60, 16, v60
    v_mov_b32 v61, v60
    s_waitcnt lgkmcnt(0)
    v_add_f32 v64, v64, v65
    v_add_f32 v66, v66, v67
    v_add_f32 v64, v64, v66
    v_mul_f32 v64, 0x3a800000, v64      ; var
    v_cvt_pk_bf16_f32 v64, v64, v64
    v_lshlrev_b32 v64, 16, v64
    v_add_f32 v64, 0x3727c5ac, v64      ; + 1e-5
    v_cvt_pk_bf16_f32 v64, v64, v64
    v_lshlrev_b32 v64, 16, v64
    v_sqrt_f32 v64, v64
    s_nop 0
    v_cvt_pk_bf16_f32 v64, v64, v64
    v_lshlrev_b32 v64, 16, v64
    v_rcp_f32 v64, v64
    s_nop 0
    v_mov_b32 v65, v64
    """)
    for i in range(4):
        for r in range(4):
            q = 4 * i + r
            d = 24 + 2 * q
            a(f"v_pk_add_f32 v[{d}:{d+1}], v[{d}:{d+1}], v[60:61] neg_lo:[0,1] neg_hi:[0,1]")
            a(f"v_cvt_pk_bf16_f32 v{8+q}, v{d}, v{d+1}")
            a(f"v_lshlrev_b32 v{d}, 16, v{8+q}")
            a(f"v_and_b32 v{d+1}, 0xffff0000, v{8+q}")
            a(f"v_pk_mul_f32 v[{d}:{d+1}], v[{d}:{d+1}], v[64:65]")
            a(f"v_cvt_pk_bf16_f32 v{8+q}, v{d}, v{d+1}")
        a(f"buffer_store_dwordx4 v[{8+4*i}:{11+4*i}], v5, s[12:15], s{16+i} offen")
    a.label(f"{name}_done")
    a("s_endpgm")
    return kernel_desc(name, 72, 24, 72)
```

```python
class VM:
    def __init__(self, text, tag): self.text, self.tag = text, tag
class VW:
    def __init__(self, tags, extra=""): self.tags, self.extra = set(tags), extra

class Trace:
    def __init__(self): self.segs = []
    def add(self, sid, recs): self.segs.append((sid, recs))
    def resolve(self):
        issued = []
        res = {}
        order = []
        for sid, recs in self.segs:
            out = []
            for r in recs:
                if isinstance(r, VM):
                    issued.append(r.tag); out.append(r.text)
                elif isinstance(r, VW):
                    last = -1
                    for i, t in enumerate(issued):
                        if t in r.tags: last = i
                    n = len(issued) - 1 - last if last >= 0 else 63
                    out.append(("W", min(n, 63), r.extra))
                else: out.append(r)
            if sid not in res:
                res[sid] = out; order.append(sid)
            else:
                prev = res[sid]
                assert len(prev) == len(out), sid
                for i, (p, o) in enumerate(zip(prev, out)):
                    if isinstance(p, tuple):
                        assert isinstance(o, tuple)
                        prev[i] = ("W", min(p[1], o[1]), p[2])
                    else: assert p == o, (sid, p, o)
        fin = {}
        for sid in order:
            fin[sid] = [(f"s_waitcnt vmcnt({x[1]}) {x[2]}".strip() if isinstance(x, tuple) else x) for x in res[sid]]
        return fin
```

```python
import sys
from build import *
from k_g2 import gen_g2
def g2w(**kw0):
    def f(a, name, **kw):
        d, lds = gen_g2(a, name=name, **kw0); return d
    return f
def full(path, stamp=False, g1={}, g2={}):
    lds2 = g2.get("nbuf", 6) * 8192
    make([("ln_kernel", gen_ln, {}, 256, 256, 256),
          ("g1_kernel", gen_g1, dict(stamp=stamp, **g1), 256, 256, 102400),
          ("g2_kernel", g2w(stamp=stamp, **g2), {}, 256, 256, lds2)], path)
if __name__ == "__main__":
    full("full_st.s", stamp=True)
    full("full.s")
    full("full_mimic.s", g1=dict(mimic=True))
    full("full_st16.s", stamp=True, g2=dict(xr=16, nbuf=10))
```

```python
from asmgen import *
from build import make
from k_ln import gen_ln
def gen(a, name="e_kernel", vg=512):
    kernel_header(a, name)
    a("s_endpgm")
    return kernel_desc(name, vg, 102, min(vg, 256))
make([("e_kernel", gen, {}, 256, 256, 0)], "e1.s")
make([("e_kernel", gen, {}, 256, 256, 0)] * 2, "e2.s")
make([("e_kernel", gen, {}, 256, 256, 0)] * 3, "e3.s")
make([("e_kernel", gen, {}, 256, 256, 0)] * 6, "e6.s")
make([("ln_kernel", gen_ln, {}, 256, 256, 256)], "e_ln.s")
make([("ln_kernel", gen_ln, {}, 256, 256, 256), ("e_kernel", gen, {}, 256, 256, 102400)], "e_ln_e.s")
```

```python
from mk import *
from mb_empty import gen as gen_e
base = [("ln_kernel", gen_ln, {}, 256, 256, 256),
      ("g1_kernel", gen_g1, {}, 256, 256, 102400),
      ("g2_kernel", g2w(), {}, 256, 256, 49152)]
E = ("e_kernel", gen_e, dict(vg=64), 256, 256, 0)
make([E]*4 + base, "../cdna_kernels/x_front4.s")
make(base + [E]*4, "../cdna_kernels/x_back4.s")
make(base, "../cdna_kernels/x_base.s")
```

```python
from asmgen import *
from k_ln import WS_XN, WS_HO, HO_BYTES, WS_DBG
import struct
def f2u(x): return struct.unpack("<I", struct.pack("<f", x))[0]

STAGE = 20480
NBUF = 5
A_QKV = 0
A_HALO = 96
A_X = 112
A_W = 192
V_GU = 32

def acc_reg(t, b):
    if t < 6:
        if b < 0: return ar(A_HALO + (t - 2) * 4, 4)
        return ar(A_QKV + (t * 4 + b) * 4, 4)
    return vr(V_GU + ((t - 6) * 4 + b) * 4, 4)
def gu_base(t, b): return V_GU + ((t - 6) * 4 + b) * 4
def x_reg(u, b): return ar(A_X + (u * 5 + (b + 1)) * 4, 4)

def blk_read(t):
    if t < 6:
        r = (t >> 1) * 2; return (12 + (t & 1), r * 1024, (r + 1) * 1024)
    base = 6 if t < 13 else 13
    tt = t - base
    if tt == 6:
        r = base + 6; return (14, r * 1024, r * 1024 + 512)
    r = base + (tt >> 1) * 2
    return (12 + (tt & 1), r * 1024, (r + 1) * 1024)

def gen_g1(a, name="g1_kernel", stamp=False, no_dma=False, no_x=False, no_tr=False, no_bar=False,
           no_epi=False, ring=5, la=4, mimic=False, pstamp=False):
    RING = ring; LA = la
    assert 20 % RING == 0 and LA < RING
    def w_reg(t): return A_W + (t % RING) * 4
    kernel_header(a, name)
    a(f"""
    s_cmp_ge_u32 s2, 256
    s_cbranch_scc1 {name}_done
    """)
    if stamp:
        a("s_memtime s[52:53]")
        a("s_memrealtime s[68:69]")
    a(f"""
    s_load_dwordx2 s[60:61], s[0:1], 8
    s_load_dwordx4 s[64:67], s[0:1], 32
    s_load_dwordx2 s[62:63], s[0:1], 72
    v_lshrrev_b32 v15, 6, v0
    v_and_b32 v1, 63, v0
    v_readfirstlane_b32 s3, v15
    s_and_b32 s5, s2, 7
    s_lshl_b32 s5, s5, 2
    s_bfe_u32 s4, s2, 0x20003
    s_add_u32 s5, s5, s4
    s_lshr_b32 s4, s2, 5                ; m
    s_lshl_b32 s6, s4, 4
    s_lshl_b32 s7, s3, 2
    s_add_u32 s6, s6, s7                ; tb0 = m*16 + 4w
    s_mul_i32 s46, s3, 5120
    v_lshrrev_b32 v16, 4, v1            ; lane>>4
    v_bfe_u32 v17, v1, 2, 2             ; (lane>>2)&3
    v_lshl_add_u32 v17, v16, 3, v17
    v_and_b32 v18, 1, v16
    v_lshlrev_b32 v18, 1, v18
    v_and_b32 v19, 3, v1
    v_xor_b32 v18, v18, v19             ; chunk_pair
    v_lshlrev_b32 v18, 4, v18
    v_mul_u32_u24 v20, 6144, v17
    v_add_u32 v20, v20, v18             ; pairQ
    v_mul_u32_u24 v21, 7168, v17
    v_add_u32 v21, v21, v18             ; pairG
    v_bfe_u32 v17, v1, 3, 2
    v_lshlrev_b32 v17, 3, v17
    v_bfe_u32 v18, v1, 1, 2             ; rho&3
    v_add_u32 v17, v17, v18
    v_lshrrev_b32 v18, 5, v1
    v_lshl_add_u32 v17, v18, 2, v17     ; krow_single
    v_mul_u32_u24 v22, 7168, v17
    v_and_b32 v18, 1, v1
    v_lshl_add_u32 v22, v18, 4, v22     ; singleG
    ; x voffsets
    s_lshl_b32 s7, s6, 10
    v_lshl_add_u32 v7, v1, 4, s7
    s_max_u32 s7, s6, 1
    s_sub_u32 s7, s7, 1
    s_lshl_b32 s7, s7, 10
    v_lshl_add_u32 v8, v1, 4, s7
    v_lshlrev_b32 v9, 8, v16
    v_bfe_u32 v17, v1, 2, 2
    v_lshl_add_u32 v9, v17, 6, v9
    v_lshl_add_u32 v9, v19, 3, v9
    v_and_b32 v17, 1, v16
    v_lshl_add_u32 v9, v17, 5, v9       ; hb=0
    v_xor_b32 v10, 32, v9               ; hb=1
    v_lshlrev_b32 v11, 3, v1            ; single
    v_mov_b32 v12, v9
    v_mov_b32 v13, v10
    v_mov_b32 v14, v11
    s_lshl_b32 s72, s5, 6               ; qkv: j*64
    s_and_b32 s73, s5, 1
    s_mul_i32 s74, s5, 7
    s_add_u32 s75, s74, s73
    s_lshl_b32 s75, s75, 5
    s_xor_b32 s73, s73, 1
    s_mul_i32 s73, s73, 6
    s_add_u32 s76, s74, s73
    s_lshl_b32 s76, s76, 5
    {"s_memtime s[86:87]" if pstamp else ""}
    s_waitcnt lgkmcnt(0)
    {"s_memtime s[88:89]" if pstamp else ""}
    s_mov_b32 s8, s62
    s_mov_b32 s9, s63
    s_mov_b32 s10, 0x400000
    s_mov_b32 s11, 0x20000
    s_add_u32 s48, s62, {WS_HO}
    s_addc_u32 s49, s63, 0
    s_mov_b32 s50, {HO_BYTES}
    s_mov_b32 s51, 0x20000
    """)
    a(f"""
    s_add_u32 s80, s62, {33 << 20}
    s_addc_u32 s81, s63, 0
    s_mov_b32 s82, 65536
    s_mov_b32 s83, 0x20000
    s_lshl_b32 s84, s2, 2
    s_add_u32 s84, s84, s3
    s_lshl_b32 s84, s84, 6
    v_mov_b32 v23, 0
    buffer_store_dword v23, v23, s[80:83], s84 offen
    """)
    for w in range(1, 4):
        a(f"s_cmp_eq_u32 s3, {w}")
        a(f"s_cbranch_scc1 {name}_setup{w}")
    for w in range(4):
        a.label(f"{name}_setup{w}")
        for i in range(5):
            r = 5 * w + i
            srd = 12 + 4 * i
            if r < 6:
                ptr, stride, pat = 60, 6144, 20
                a(f"s_add_u32 s{32+i}, s72, {(r >> 1) * 2048 + (r & 1) * 4 * stride}")
            else:
                ptr = 64 if r < 13 else 66
                stride = 7168
                rr = r - (6 if r < 13 else 13)
                if rr == 6:
                    pat = 22
                    a(f"s_mov_b32 s{32+i}, s76")
                else:
                    pat = 21
                    a(f"s_add_u32 s{32+i}, s75, {(rr >> 1) * 64 + (rr & 1) * 4 * stride}")
            a(f"s_mov_b32 s{srd}, s{ptr}")
            a(f"s_mov_b32 s{srd+1}, s{ptr+1}")
            a(f"s_mov_b32 s{srd+2}, {1024 * stride}")
            a(f"s_mov_b32 s{srd+3}, 0x20000")
            a(f"s_mov_b32 s{37+i}, {32 * stride}")
            a(f"v_mov_b32 v{2+i}, v{pat}")
        if w < 3: a(f"s_branch {name}_setup_done")
    a.label(f"{name}_setup_done")

    def dma(i): return f"buffer_load_dwordx4 v{2+i}, s[{12+4*i}:{15+4*i}], s{32+i} offen lds"
    def xload(u, b):
        if b < 0: return f"buffer_load_dwordx4 {x_reg(u, b)}, v8, s[8:11], s42 offen"
        return f"buffer_load_dwordx4 {x_reg(u, b)}, v7, s[8:11], s42 offen offset:{b*1024}"
    def trread(t, p):
        v, o0, o1 = blk_read(t)
        return f"ds_read_b64_tr_b16 {ar(w_reg(t) + 2 * p, 2)}, v{v} offset:{o1 if p else o0}"

    if pstamp: a("s_memtime s[90:91]")
    a("s_mov_b32 s42, 0")
    a("s_add_u32 s47, s46, %d" % (NBUF * STAGE))
    for st in range(4):
        for i in range(5 if st < 3 else 2):
            a(f"s_add_u32 m0, s46, {st * STAGE + i * 1024}")
            a("s_nop 0")
            a(dma(i))
            a(f"s_add_u32 s{32+i}, s{32+i}, s{37+i}")
        if st < 3:
            for b in range(-1, 4): a(xload(st, b))
            a("s_add_u32 s42, s42, 0x20000")
    a(f"s_add_u32 s44, s46, {3 * STAGE}")
    a("s_mov_b32 s43, 0")
    if pstamp: a("s_memtime s[92:93]")
    for r in range(A_HALO + 16): a(f"v_accvgpr_write_b32 a{r}, 0")
    for r in range(V_GU, 256): a(f"v_mov_b32 v{r}, 0")
    a("s_mov_b32 s45, 8")
    if pstamp: a("s_memtime s[94:95]")
    a("s_waitcnt vmcnt(22)")
    if pstamp: a("s_memtime s[96:97]")
    a("s_barrier")
    if pstamp:
        a("s_memtime s[54:55]")
        a(f"""
        s_waitcnt lgkmcnt(0)
        s_add_u32 s80, s62, {WS_DBG + 0x30000}
        s_addc_u32 s81, s63, 0
        s_mov_b32 s82, 0x100000
        s_lshl_b32 s7, s2, 2
        s_add_u32 s7, s7, s3
        s_lshl_b32 s7, s7, 5
        """)
        for k, sg in enumerate([52, 86, 88, 90, 92, 94, 96, 54]):
            a(f"v_mov_b32 v16, s{sg}")
            a(f"buffer_store_dword v16, v23, s[80:83], s7 offen offset:{4*k}")
        a("s_waitcnt vmcnt(0)")
    for t in range(LA):
        a(trread(t, 0)); a(trread(t, 1))
    if stamp: a("s_memtime s[54:55]"); a("s_memrealtime s[98:99]"); a("s_waitcnt lgkmcnt(0)")
    a.raw(".p2align 6")
    a.label(f"{name}_loop")
    BAR_T = 20 - LA
    for u in range(4):
        dma_at = {BAR_T: 0, BAR_T + 2: 1, 0: 2, 2: 3, 4: 4}
        x_at = {6: -1, 8: 0, 10: 1, 12: 2, 14: 3}
        for t in range(20):
            bs = [0, 1, 2, 3] + ([-1] if 2 <= t < 6 else [])
            fill = {i: [] for i in range(len(bs))}
            tn = (t + LA) % 20
            if t == BAR_T and not no_bar:
                fill[0] += ["s_waitcnt vmcnt(20)", "s_barrier"]
            if not no_tr:
                fill[0].append(trread(tn, 0))
                fill[1].append(trread(tn, 1))
            if t in dma_at and not no_dma:
                i = dma_at[t]
                fill[1].append(f"s_add_u32 m0, s44, {i * 1024}")
                fill[2].append(dma(i))
                fill[3].append(f"s_add_u32 s{32+i}, s{32+i}, s{37+i}")
            if t in x_at and not no_x:
                fill[2].append(xload((u + 3) % 4, x_at[t]))
            if t == 15 and not no_x: pass
            if t == 7:
                fill[2] += [f"s_add_u32 s43, s43, {STAGE}", f"s_cmp_ge_u32 s43, {NBUF*STAGE}"]
                fill[3] += ["s_cselect_b32 s43, 0, s43"]
            if t == 9:
                fill[2] += [f"s_add_u32 s44, s44, {STAGE}", "s_cmp_ge_u32 s44, s47"]
                fill[3] += ["s_cselect_b32 s44, s46, s44"]
            if t == BAR_T - 1:
                fill[2] += ["v_add_u32 v12, s43, v9", "v_add_u32 v13, s43, v10"]
                fill[3] += ["v_add_u32 v14, s43, v11"]
            if t == 17:
                fill[2] += ["s_add_u32 s42, s42, 0x20000"]
            if t == 19 and u == 3:
                fill[2] += ["s_sub_u32 s45, s45, 1"]
                fill[3] += ["s_cmp_lg_u32 s45, 0"]
            if not no_tr: a(f"s_waitcnt lgkmcnt({2 * (LA - 1)})")
            for i, b in enumerate(bs):
                w = ar(w_reg(t), 4); x = x_reg(u, b); c = acc_reg(t, b)
                if t in (4, 5): a(f"v_mfma_f32_16x16x32_bf16 {c}, {x}, {w}, {c}")
                else: a(f"v_mfma_f32_16x16x32_bf16 {c}, {w}, {x}, {c}")
                for f in fill[i]: a(f)
    a(f"s_cbranch_scc1 {name}_loop")
    if stamp: a("s_memtime s[56:57]"); a("s_memrealtime s[100:101]"); a("s_waitcnt lgkmcnt(0)")
    a("s_nop 7")
    if not no_epi: epilogue(a, name, mimic)
    if stamp:
        a("s_waitcnt vmcnt(0)")
        a("s_memtime s[58:59]")
        a("s_memrealtime s[70:71]")
        a(f"""
        s_waitcnt lgkmcnt(0)
        s_add_u32 s8, s62, {WS_DBG}
        s_addc_u32 s9, s63, 0
        s_mov_b32 s10, 0x100000
        s_mov_b32 s11, 0x20000
        s_lshl_b32 s7, s2, 2
        s_add_u32 s7, s7, s3
        s_lshl_b32 s7, s7, 6
        v_mov_b32 v1, 0
        s_getreg_b32 s72, hwreg(HW_REG_XCC_ID)
        """)
        for k, s in enumerate([52, 53, 54, 55, 56, 57, 58, 59, 68, 69, 70, 71, 72, 98, 100]):
            a(f"v_mov_b32 v16, s{s}")
            a(f"buffer_store_dword v16, v1, s[8:11], s7 offen offset:{4*k}")
    a.label(f"{name}_done")
    a("s_endpgm")
    return kernel_desc(name, 512, 102, 256)

def epilogue(a, name, mimic):
    a(f"""
    s_mov_b32 s76, {f2u(-1.4426950408889634):#x}
    s_mov_b32 s77, s76
    s_mov_b32 s78, 1.0
    s_mov_b32 s79, 1.0
    s_lshr_b32 s75, s75, 6
    s_lshl_b32 s75, s75, 17
    s_and_b32 s73, s5, 1
    s_mul_i32 s74, s5, 7
    s_xor_b32 s72, s73, 1
    s_mul_i32 s72, s72, 6
    s_add_u32 s74, s74, s72
    s_lshr_b32 s74, s74, 1
    s_lshl_b32 s74, s74, 17
    s_lshl_b32 s73, s73, 3
    s_add_u32 s74, s74, s73
    """)
    def silu_blocks(blks, outs):
        for G, U in blks:
            for h in (0, 2):
                a(f"v_pk_mul_f32 v[{U+h}:{U+h+1}], v[{G+h}:{G+h+1}], v[{U+h}:{U+h+1}]")
                a(f"v_pk_mul_f32 v[{G+h}:{G+h+1}], v[{G+h}:{G+h+1}], s[76:77]")
        for G, U in blks:
            for r in range(4): a(f"v_exp_f32 v{G+r}, v{G+r}")
        a("s_nop 0")
        for G, U in blks:
            for h in (0, 2): a(f"v_pk_add_f32 v[{G+h}:{G+h+1}], v[{G+h}:{G+h+1}], s[78:79]")
        for G, U in blks:
            for r in range(4): a(f"v_rcp_f32 v{G+r}, v{G+r}")
        a("s_nop 0")
        for G, U in blks:
            for h in (0, 2): a(f"v_pk_mul_f32 v[{G+h}:{G+h+1}], v[{G+h}:{G+h+1}], v[{U+h}:{U+h+1}]")
        for (G, U), O in zip(blks, outs):
            a(f"v_cvt_pk_bf16_f32 v{O}, v{G}, v{G+1}")
            a(f"v_cvt_pk_bf16_f32 v{O+1}, v{G+2}, v{G+3}")
    k = 0
    for i in range(3):
        for b in range(4):
            O = 16 + 4 * (k % 4); k += 1
            silu_blocks([(gu_base(6 + 2 * i, b), gu_base(13 + 2 * i, b)),
                         (gu_base(7 + 2 * i, b), gu_base(14 + 2 * i, b))], [O, O + 2])
            a(f"buffer_store_dwordx4 v[{O}:{O+3}], v7, s[48:51], s75 offen offset:{b*1024}")
        a("s_add_u32 s75, s75, 0x20000")
    for b0 in (0, 2):
        O = 16 + 4 * (k % 4); k += 1
        silu_blocks([(gu_base(12, b0), gu_base(19, b0)), (gu_base(12, b0 + 1), gu_base(19, b0 + 1))], [O, O + 2])
        a(f"buffer_store_dwordx2 v[{O}:{O+1}], v7, s[48:51], s74 offen offset:{b0*1024}")
        a(f"buffer_store_dwordx2 v[{O+2}:{O+3}], v7, s[48:51], s74 offen offset:{(b0+1)*1024}")
    a("""
    v_and_b32 v32, 15, v1
    v_lshrrev_b32 v33, 4, v1
    v_lshlrev_b32 v33, 2, v33
    v_sub_u32 v32, v32, v33             ; j - 4g
    """)
    MP, MC, M0P = 72, 80, 88
    for r in range(4):
        for base, add in ((MP, 16), (MC, 0)):
            a(f"v_add_u32 v33, {add - r}, v32")
            a(f"v_and_b32 v33, 0xfffffff1, v33")
            a(f"v_cmp_eq_u32 s[{base+2*r}:{base+2*r+1}], 0, v33")
    a("s_nop 1")
    a("s_cmp_eq_u32 s6, 0")
    for r in range(4):
        a(f"s_cselect_b64 s[{M0P+2*r}:{M0P+2*r+1}], 0, s[{MP+2*r}:{MP+2*r+1}]")
    QF, KF, V0, V1 = 40, 56, 76, 86
    T = 100
    def areg(t, b):
        if b < 0: return A_HALO + (t - 2) * 4
        return A_QKV + (t * 4 + b) * 4
    def pack(dst, t, b, tmp):
        for r in range(4): a(f"v_accvgpr_read_b32 v{tmp+r}, a{areg(t, b)+r}")
        a(f"v_cvt_pk_bf16_f32 v{dst}, v{tmp}, v{tmp+1}")
        a(f"v_cvt_pk_bf16_f32 v{dst+1}, v{tmp+2}, v{tmp+3}")
    k = 0
    for b in range(-1, 4):
        if b >= 0:
            for h in range(2): pack(QF + 4 * b + 2 * h, h, b, T + 4 * (k % 4)); k += 1
        for h in range(2): pack(KF + 4 * (b + 1) + 2 * h, 2 + h, b, T + 4 * (k % 4)); k += 1
        pack(V0 + 2 * (b + 1), 4, b, T + 4 * (k % 4)); k += 1
        pack(V1 + 2 * (b + 1), 5, b, T + 4 * (k % 4)); k += 1
    S = 120
    a("s_nop 1")
    for b in range(4):
        a(f"v_mfma_f32_16x16x32_bf16 v[{S+8*b}:{S+8*b+3}], v[{KF+4*b}:{KF+4*b+3}], v[{QF+4*b}:{QF+4*b+3}], 0")
        a(f"v_mfma_f32_16x16x32_bf16 v[{S+8*b+4}:{S+8*b+7}], v[{KF+4*b+4}:{KF+4*b+7}], v[{QF+4*b}:{QF+4*b+3}], 0")
    a("v_mov_b32 v34, 0xff800000")
    c = 0.17677669529663687 * 1.4426950408889634
    a(f"s_mov_b32 s96, {f2u(c if not mimic else 1.4426950408889634):#x}")
    a(f"s_mov_b32 s97, {f2u(0.1767578125):#x}")
    a("s_nop 7")
    if mimic:
        a(f"s_mov_b32 s97, {f2u(0.17677669529663687):#x}")
        for rnd in range(2):
            for i in range(0, 32, 2):
                a(f"v_cvt_pk_bf16_f32 v{S+i+1}, v{S+i}, v{S+i+1}")
                a(f"v_lshlrev_b32 v{S+i}, 16, v{S+i+1}")
                a(f"v_and_b32 v{S+i+1}, 0xffff0000, v{S+i+1}")
                if rnd == 0:
                    a(f"v_mul_f32 v{S+i}, s97, v{S+i}")
                    a(f"v_mul_f32 v{S+i+1}, s97, v{S+i+1}")
    for b in range(4):
        for r in range(4):
            mp = (M0P if b == 0 else MP) + 2 * r
            a(f"v_cndmask_b32 v{S+8*b+r}, v34, v{S+8*b+r}, s[{mp}:{mp+1}]")
            a(f"v_cndmask_b32 v{S+8*b+4+r}, v34, v{S+8*b+4+r}, s[{MC+2*r}:{MC+2*r+1}]")
    MX, TT = 152, 156
    for b in range(4):
        s = S + 8 * b
        a(f"v_max3_f32 v{MX+b}, v{s}, v{s+1}, v{s+2}")
        a(f"v_max3_f32 v{TT+b}, v{s+3}, v{s+4}, v{s+5}")
    for b in range(4):
        s = S + 8 * b
        a(f"v_max3_f32 v{MX+b}, v{MX+b}, v{s+6}, v{s+7}")
    for b in range(4): a(f"v_max_f32 v{MX+b}, v{MX+b}, v{TT+b}")
    def allred(op):
        for sw in ("v_permlane16_swap_b32", "v_permlane32_swap_b32"):
            for b in range(4): a(f"v_mov_b32 v{TT+b}, v{MX+b}")
            a("s_nop 1")
            for b in range(4): a(f"{sw} v{MX+b}, v{TT+b}")
            a("s_nop 1")
            for b in range(4): a(f"{op} v{MX+b}, v{MX+b}, v{TT+b}")
    allred("v_max_f32")
    for b in range(4): a(f"v_mul_f32 v{MX+b}, s96, v{MX+b}")
    for b in range(4):
        for r in range(8): a(f"v_fma_f32 v{S+8*b+r}, v{S+8*b+r}, s96, -v{MX+b}")
    for i in range(32): a(f"v_exp_f32 v{S+i}, v{S+i}")
    a("s_nop 0")
    for b in range(4):
        s = S + 8 * b
        a(f"v_add_f32 v{MX+b}, v{s}, v{s+1}")
        a(f"v_add_f32 v{TT+b}, v{s+2}, v{s+3}")
    for r in (4, 6):
        for b in range(4):
            s = S + 8 * b
            a(f"v_add_f32 v{MX+b}, v{MX+b}, v{s+r}")
            a(f"v_add_f32 v{TT+b}, v{TT+b}, v{s+r+1}")
    for b in range(4): a(f"v_add_f32 v{MX+b}, v{MX+b}, v{TT+b}")
    allred("v_add_f32")
    for b in range(4): a(f"v_rcp_f32 v{MX+b}, v{MX+b}")
    a("s_nop 0")
    for b in range(4):
        for r in range(8): a(f"v_mul_f32 v{S+8*b+r}, v{S+8*b+r}, v{MX+b}")
    P = 160
    for b in range(4):
        for r in range(4): a(f"v_cvt_pk_bf16_f32 v{P+4*b+r}, v{S+8*b+2*r}, v{S+8*b+2*r+1}")
    O = 176
    a("s_nop 1")
    for b in range(4):
        a(f"v_mfma_f32_16x16x32_bf16 v[{O+8*b}:{O+8*b+3}], v[{V0+2*b}:{V0+2*b+3}], v[{P+4*b}:{P+4*b+3}], 0")
        a(f"v_mfma_f32_16x16x32_bf16 v[{O+8*b+4}:{O+8*b+7}], v[{V1+2*b}:{V1+2*b+3}], v[{P+4*b}:{P+4*b+3}], 0")
    a("s_add_u32 s75, s5, 112")
    a("s_lshl_b32 s75, s75, 17")
    a("s_nop 7")
    OP = 208
    for b in range(4):
        for r in range(4): a(f"v_cvt_pk_bf16_f32 v{OP+4*b+r}, v{O+8*b+2*r}, v{O+8*b+2*r+1}")
        a(f"buffer_store_dwordx4 v[{OP+4*b}:{OP+4*b+3}], v7, s[48:51], s75 offen offset:{b*1024}")
```

```python
from asmgen import *
from sched import *
from k_ln import WS_XN, WS_HO, HO_BYTES, WS_DBG
import struct, re
def f2u(x): return struct.unpack("<I", struct.pack("<f", x))[0]

WS_FLAG2 = 33 << 20
WS_HALO = 34 << 20
WS_FLAG1 = 36 << 20
STAGE = 20480
NBUF = 5
A_QKV = 0; A_X = 96; A_W = 160
V_GU = 32

class Gap:
    def __init__(self, n): self.n = n
class After:
    def __init__(self, p): self.p = p

def acc_base(t, b):
    if t < 6: return ("a", A_QKV + (t * 4 + b) * 4)
    return ("v", V_GU + ((t - 6) * 4 + b) * 4)
def acc_reg(t, b):
    k, r = acc_base(t, b); return vr(r, 4, k)
def gu_base(t, b): return V_GU + ((t - 6) * 4 + b) * 4
def x_reg(s, b): return ar(A_X + ((s % 4) * 4 + b) * 4, 4)
def blk_read(t):
    if t < 6:
        r = (t >> 1) * 2; return (t & 1, r * 1024, (r + 1) * 1024)
    base = 6 if t < 13 else 13
    tt = t - base
    if tt == 6:
        r = base + 6; return (2, r * 1024, r * 1024 + 512)
    r = base + (tt >> 1) * 2
    return (tt & 1, r * 1024, (r + 1) * 1024)

def gen_g1(a, name="g1_kernel", stamp=False, mimic=True, pf=True, pfd=2, stflags="", overlap=True, snake=True, cap=2, pf2=True, nopk=False, strict=False, p1pos=(0, 1), p2pos=(2, 1)):
    RING, LA = 5, 4
    kernel_header(a, name)
    a(f"""
    s_cmp_ge_u32 s2, 256
    s_cbranch_scc1 {name}_done
    """)
    if stamp:
        a("s_memtime s[52:53]"); a("s_memrealtime s[68:69]")
    a(f"""
    s_load_dwordx4 s[56:59], s[0:1], 8
    s_load_dwordx4 s[64:67], s[0:1], 32
    s_load_dwordx2 s[60:61], s[0:1], 48     ; down
    s_load_dwordx2 s[62:63], s[0:1], 72     ; ws
    v_lshrrev_b32 v15, 6, v0
    v_and_b32 v1, 63, v0
    v_readfirstlane_b32 s3, v15
    s_and_b32 s77, s2, 7                ; xcd
    s_lshl_b32 s5, s77, 2
    s_bfe_u32 s4, s2, 0x20003
    s_add_u32 s5, s5, s4
    s_lshr_b32 s4, s2, 5                ; m
    s_lshl_b32 s6, s4, 4
    s_lshl_b32 s7, s3, 2
    s_add_u32 s6, s6, s7                ; tb0 = m*16 + 4w
    s_mul_i32 s46, s3, 5120
    v_lshrrev_b32 v16, 4, v1
    v_bfe_u32 v17, v1, 2, 2
    v_lshl_add_u32 v17, v16, 3, v17     ; krow_pair
    v_and_b32 v18, 1, v16
    v_lshlrev_b32 v18, 1, v18
    v_and_b32 v19, 3, v1
    v_xor_b32 v18, v18, v19
    v_lshlrev_b32 v18, 4, v18
    v_mul_u32_u24 v20, 6144, v17
    v_add_u32 v20, v20, v18             ; pairQ
    v_mul_u32_u24 v21, 7168, v17
    v_add_u32 v21, v21, v18             ; pairG
    v_bfe_u32 v17, v1, 3, 2
    v_lshlrev_b32 v17, 3, v17
    v_bfe_u32 v18, v1, 1, 2
    v_add_u32 v17, v17, v18
    v_lshrrev_b32 v18, 5, v1
    v_lshl_add_u32 v17, v18, 2, v17
    v_mul_u32_u24 v22, 7168, v17
    v_and_b32 v18, 1, v1
    v_lshl_add_u32 v22, v18, 4, v22     ; singleG
    s_lshl_b32 s7, s6, 10
    v_lshl_add_u32 v7, v1, 4, s7
    v_lshlrev_b32 v9, 8, v16
    v_bfe_u32 v17, v1, 2, 2
    v_lshl_add_u32 v9, v17, 6, v9
    v_lshl_add_u32 v9, v19, 3, v9
    v_and_b32 v17, 1, v16
    v_lshl_add_u32 v9, v17, 5, v9
    v_xor_b32 v10, 32, v9
    v_lshlrev_b32 v11, 3, v1
    v_mov_b32 v12, v9
    v_mov_b32 v13, v10
    v_mov_b32 v14, v11
    s_lshl_b32 s72, s5, 6
    s_and_b32 s73, s5, 1
    s_mul_i32 s74, s5, 7
    s_add_u32 s75, s74, s73
    s_lshl_b32 s75, s75, 5
    s_xor_b32 s73, s73, 1
    s_mul_i32 s73, s73, 6
    s_add_u32 s76, s74, s73
    s_lshl_b32 s76, s76, 5
    s_mov_b32 s10, 0x400000
    s_mov_b32 s11, 0x20000
    s_mov_b32 s42, 0
    """)
    for w in range(1, 4):
        a(f"s_cmp_eq_u32 s3, {w}")
        a(f"s_cbranch_scc1 {name}_setup{w}")
    for w in range(4):
        a.label(f"{name}_setup{w}")
        ptrs = []
        for i in range(5):
            r = 5 * w + i
            srd = 12 + 4 * i
            if r < 6:
                ptr, stride, pat = 56, 6144, 20
                a(f"s_add_u32 s{32+i}, s72, {(r >> 1) * 2048 + (r & 1) * 4 * stride}")
            else:
                ptr = 64 if r < 13 else 66
                stride = 7168
                rr = r - (6 if r < 13 else 13)
                if rr == 6:
                    pat = 22; a(f"s_mov_b32 s{32+i}, s76")
                else:
                    pat = 21; a(f"s_add_u32 s{32+i}, s75, {(rr >> 1) * 64 + (rr & 1) * 4 * stride}")
            a(f"s_mov_b32 s{srd+2}, {1024 * stride}")
            a(f"s_mov_b32 s{srd+3}, 0x20000")
            a(f"s_mov_b32 s{37+i}, {32 * stride}")
            a(f"v_mov_b32 v{2+i}, v{pat}")
            ptrs.append((srd, ptr))
        a("s_waitcnt lgkmcnt(0)")
        for srd, ptr in ptrs: a(f"s_mov_b64 s[{srd}:{srd+1}], s[{ptr}:{ptr+1}]")
        a(f"s_mov_b64 s[84:85], s[{[56, 64, 66, 58][w]}:{[56, 64, 66, 58][w]+1}]")
        if w < 3: a(f"s_branch {name}_setup_done")
    a.label(f"{name}_setup_done")
    a("s_mov_b64 s[8:9], s[62:63]")

    def dma_ops(st, i, static):
        m0 = f"s_add_u32 m0, s46, {(st % NBUF) * STAGE + i * 1024}" if static else f"s_add_u32 m0, s44, {i * 1024}"
        return (m0, VM(f"buffer_load_dwordx4 v{2+i}, s[{12+4*i}:{15+4*i}], s{32+i} offen lds", ("W", st)),
                f"s_add_u32 s{32+i}, s{32+i}, s{37+i}")
    def x_ops(s, b):
        return (None, VM(f"buffer_load_dwordx4 {x_reg(s, b)}, v7, s[8:11], s42 offen offset:{b*1024}", ("X", s)),
                "s_add_u32 s42, s42, 0x20000" if b == 3 else None)
    def trread(dst, t, p, base=12, extra=0):
        v, o0, o1 = blk_read(t)
        return f"ds_read_b64_tr_b16 {ar(dst + 2 * p, 2)}, v{base + v} offset:{(o1 if p else o0) + extra}"
    def w_reg(tau): return A_W + (tau % RING) * 4

    tr = Trace()
    pro = []
    for i in range(5):
        m0, d, adv = dma_ops(0, i, True); pro += [m0, "s_nop 0", d, adv]
    for b in range(4):
        _, d, adv = x_ops(0, b); pro += [d] + ([adv] if adv else [])
    pro += f"""
    s_add_u32 s48, s62, {WS_HO}
    s_addc_u32 s49, s63, 0
    s_mov_b32 s50, {HO_BYTES}
    s_mov_b32 s51, 0x20000
    s_add_u32 s80, s62, {WS_FLAG2}
    s_addc_u32 s81, s63, 0
    s_mov_b32 s82, {WS_FLAG1 - WS_FLAG2 + 65536}
    s_mov_b32 s83, 0x20000
    s_lshl_b32 s78, s2, 2
    s_add_u32 s78, s78, s3
    s_lshl_b32 s79, s78, 6
    v_mov_b32 v23, 0
    s_add_u32 s47, s46, {NBUF * STAGE}
    s_mov_b32 s43, 0
    s_lshr_b32 s7, s2, 3
    """.strip().split("\n")
    pro.append(VM("buffer_store_dword v23, v23, s[80:83], s79 offen", ("Z", 0)))
    pro += f"""
    v_and_b32 v24, 7, v1
    v_min_u32 v25, 6, v24
    v_lshlrev_b32 v25, 7, v25
    v_mul_u32_u24 v26, 7168, v16
    v_add_u32 v25, v25, v26
    v_min_u32 v24, 5, v24
    v_lshrrev_b32 v27, 1, v24
    v_lshlrev_b32 v27, 11, v27
    v_and_b32 v24, 1, v24
    v_lshl_add_u32 v27, v24, 7, v27
    v_mul_u32_u24 v26, 6144, v16
    v_add_u32 v27, v27, v26
    v_lshlrev_b32 v26, 7, v1
    s_cmp_eq_u32 s3, 0
    s_cselect_b64 vcc, -1, 0
    s_movk_i32 s88, 7168
    s_cselect_b32 s88, 6144, s88
    s_movk_i32 s89, 896
    s_cselect_b32 s89, 256, s89
    v_cndmask_b32 v8, v25, v27, vcc
    s_mul_i32 s89, s89, s77
    s_lshl_b32 s90, s7, 2
    s_add_u32 s90, s90, {pfd * 128}
    s_mul_i32 s90, s90, s88
    s_add_u32 s89, s89, s90
    s_lshl_b32 s86, s88, 10
    s_lshl_b32 s88, s88, 7
    s_mov_b32 s87, 0x20000
    s_lshl_b32 s90, s2, 13
    s_cmp_eq_u32 s3, 3
    s_cselect_b64 vcc, -1, 0
    s_cselect_b32 s89, s90, s89
    s_cselect_b32 s86, 0x200000, s86
    s_cselect_b32 s88, 0x200000, s88
    v_cndmask_b32 v8, v8, v26, vcc
    s_mov_b64 s[92:93], s[60:61]
    s_mov_b32 s94, {3584*2048}
    s_mov_b32 s95, 0x20000
    v_lshrrev_b32 v15, 1, v1
    v_lshlrev_b32 v15, 7, v15
    s_and_b32 s90, s2, 1
    s_mul_i32 s90, s90, {1792*2048}
    s_lshl_b32 s91, s7, 2
    s_add_u32 s91, s91, s3
    s_lshl_b32 s91, s91, 12
    s_add_u32 s90, s90, s91
    s_add_u32 s90, s90, {6*256*2048}
    """.strip().split("\n")
    pro += [VW([("W", 0), ("X", 0)]), "s_barrier"]
    for t in range(LA): pro += [trread(w_reg(t), t, 0), trread(w_reg(t), t, 1)]
    tr.add("pro", pro)

    NS = 32
    LSTART = 29 if overlap else 32
    BAR_T = 20 - LA
    ops = []
    for st in range(1, NS):
        for i, p in enumerate([BAR_T, BAR_T + 2, 20, 22, 24]):
            ops.append(((st - 4) * 20 + p, "W", st, i))
        for b, p in enumerate([7, 9, 11, 13]):
            ops.append(((st - 3) * 20 + p, "X", st, b))
    ops.sort(key=lambda o: o[0])
    place = {}
    prev = -1
    for nom, kind, st, i in ops:
        p = max(nom, prev + 1)
        if p >= 28 * 20 and overlap: p = max(28 * 20, prev + 1)
        place[p] = (kind, st, i); prev = p
    def mfma(t, s, b, tau, first):
        w = ar(w_reg(tau), 4); x = x_reg(s, b); c = acc_reg(t, b); cin = "0" if first else c
        if t in (4, 5): return f"v_mfma_f32_16x16x32_bf16 {c}, {x}, {w}, {cin}"
        return f"v_mfma_f32_16x16x32_bf16 {c}, {w}, {x}, {cin}"
    tail_order = [6, 13, 7, 14, 2, 3, 4, 5] + [x for i in range(2, 7) for x in (6 + i, 13 + i)] + [0, 1]
    tail = [(t, s) for t in tail_order for s in range(LSTART, NS)]
    def tail_read(dst, k, p):
        t, s = tail[k]; buf = s % NBUF
        if buf * STAGE + STAGE <= 65536: return trread(dst, t, p, base=9, extra=buf * STAGE)
        return trread(dst, t, p, base=12, extra=(buf - 3) * STAGE)
    def step_code(s):
        R = []
        it = s // 4
        static = it == 0 or it == 7
        for t in range(20):
            gp = s * 20 + t
            fill = [[], [], [], []]
            lastn = s == LSTART - 1 and t >= BAR_T
            if t == BAR_T and s + 1 < NS:
                need = [("W", s + 1), ("X", s + 1)]
                if s == LSTART - 1: need = [(k, q) for k in "WX" for q in range(s + 1, NS)]
                fill[0] += [VW(need), "s_barrier"]
            if lastn and LSTART < NS:
                fill[0].append(tail_read(w_reg(gp + LA), t - BAR_T, 0)); fill[1].append(tail_read(w_reg(gp + LA), t - BAR_T, 1))
            elif not (s == NS - 1 and t >= BAR_T):
                tn = (t + LA) % 20
                fill[0].append(trread(w_reg(gp + LA), tn, 0)); fill[1].append(trread(w_reg(gp + LA), tn, 1))
            if gp in place:
                kind, st, i = place[gp]
                m0, d, adv = dma_ops(st, i, static) if kind == "W" else x_ops(st, i)
                if m0: fill[1].append(m0)
                fill[2].append(d)
                if adv: fill[3].append(adv)
            if t == 6:
                fill[0] += [f"s_add_u32 s43, s43, {STAGE}"]
                fill[3] += [f"s_cmp_ge_u32 s43, {NBUF*STAGE}", "s_cselect_b32 s43, 0, s43"]
            if t == 8 and 0 < it < 7:
                fill[0] += [f"s_add_u32 s44, s44, {STAGE}"]
                fill[3] += ["s_cmp_ge_u32 s44, s47", "s_cselect_b32 s44, s46, s44"]
            if t == 8 and s == 3: fill[3] += [f"s_add_u32 s44, s46, {(7 % NBUF) * STAGE}"]
            if t == BAR_T - 1:
                if s == LSTART - 1 and LSTART < NS:
                    fill[2] += [f"v_add_u32 v12, {3*STAGE}, v9", f"v_add_u32 v13, {3*STAGE}, v10"]
                    fill[3] += [f"v_add_u32 v14, {3*STAGE}, v11"]
                else:
                    fill[2] += ["v_add_u32 v12, s43, v9", "v_add_u32 v13, s43, v10"]
                    fill[3] += ["v_add_u32 v14, s43, v11"]
            if pf and (s % 4, t) == p1pos and it < 7:
                fill[3] += [VM("buffer_load_dword v0, v8, s[84:87], s89 offen", ("P", s)), "s_add_u32 s89, s89, s88"]
            if pf2 and ((s % 4, t) == p2pos and it < 7):
                fill[3] += [VM("buffer_load_dword v0, v15, s[92:95], s90 offen", ("P", s)), f"s_sub_u32 s90, s90, {256*2048}"]
            rem = LA if (s < NS - 1 or t < BAR_T) else 20 - t
            R.append(f"s_waitcnt lgkmcnt({2 * (rem - 1)})")
            bs = [0, 1, 2, 3] if (t % 2 == 0 or not snake) else [3, 2, 1, 0]
            for i, b in enumerate(bs):
                R.append(mfma(t, s, b, gp, s == 0))
                R += fill[i]
        return R
    for it in range(8):
        recs = []
        for s in range(4 * it, min(4 * it + 4, LSTART)): recs += step_code(s)
        tr.add("first" if it == 0 else ("last" if it == 7 else "loop"), recs)
    main = []
    g0 = LSTART * 20
    for k, (t, s) in enumerate(tail):
        rem = min(LA, len(tail) - k)
        unit = [f"s_waitcnt lgkmcnt({2*(rem-1)})"]
        bs = [0, 1, 2, 3] if (k % 2 == 0 or not snake) else [3, 2, 1, 0]
        for i, b in enumerate(bs):
            unit.append(("M", mfma(t, s, b, g0 + k, False)))
            if i < 2 and k + LA < len(tail): unit.append(tail_read(w_reg(g0 + k + LA), k + LA, i))
        main.append(unit)
    L = NS - LSTART
    def ready(t):
        return (tail_order.index(t) + 1) * L + 1 if L else 0
    fl = epilogue_stream(name, mimic, stflags, ready)
    out = []
    fi = 0; since = 0; gapneed = 0
    def cost(x):
        tx = x.text if isinstance(x, VM) else x
        if isinstance(tx, str) and (tx.startswith("v_exp") or tx.startswith("v_rcp")): return 2
        return 1
    def try_fill(budget, pos):
        nonlocal fi, since, gapneed
        while fi < len(fl):
            x = fl[fi]
            if isinstance(x, After):
                if pos < x.p: return
                fi += 1; continue
            if isinstance(x, Gap):
                gapneed = max(gapneed, x.n); fi += 1; continue
            if since < gapneed:
                if pos < 10**6: return
                out.append(f"s_nop {gapneed - since - 1}")
            if pos < 10**6 and isinstance(x, str) and (x.endswith(":") or "cbranch" in x): return
            c = cost(x)
            if budget <= 0 or (strict and c > budget): return
            if nopk and pos < 10**6 and isinstance(x, str) and x.startswith("v_pk_"):
                m = re.match(r"v_pk_(\w+)_f32 v\[(\d+):\d+\], v\[(\d+):\d+\], ([vs])\[(\d+):\d+\]$", x)
                op, d, s0, k1, s1 = m.group(1), int(m.group(2)), int(m.group(3)), m.group(4), int(m.group(5))
                fl[fi:fi+1] = [f"v_{op}_f32 v{d+e}, {k1}{s1+e}, v{s0+e}" for e in range(2)]
                x = fl[fi]
            out.append(x); budget -= c; fi += 1; since = 0; gapneed = 0
    for k, unit in enumerate(main):
        for j, u in enumerate(unit):
            if isinstance(u, tuple):
                out.append(u[1]); since += 1
                nxt = unit[j + 1] if j + 1 < len(unit) else "w"
                used = 0 if isinstance(nxt, tuple) else 1
                try_fill(cap - used, k)
            else:
                out.append(u); since += 1
    if stamp: out += ["s_memtime s[56:57]", "s_memrealtime s[100:101]", "s_waitcnt lgkmcnt(0)"]
    out.append("s_nop 7")
    since += 8
    try_fill(10**9, 10**6)
    tr.add("tail", out)
    res = tr.resolve()
    for l in res["pro"]: a(l)
    if stamp: a("s_memtime s[54:55]"); a("s_memrealtime s[98:99]"); a("s_waitcnt lgkmcnt(0)")
    for l in res["first"]: a(l)
    a("s_mov_b32 s45, 6")
    a.raw(".p2align 6")
    a.label(f"{name}_loop")
    for l in res["loop"]: a(l)
    a("s_sub_u32 s45, s45, 1"); a("s_cmp_lg_u32 s45, 0"); a(f"s_cbranch_scc1 {name}_loop")
    for l in res["last"]: a(l)
    for l in res["tail"]: a(l)
    if stamp:
        a("s_waitcnt vmcnt(0)")
        a("s_memtime s[58:59]")
        a("s_memrealtime s[70:71]")
        a(f"""
        s_waitcnt lgkmcnt(0)
        s_add_u32 s8, s62, {WS_DBG}
        s_addc_u32 s9, s63, 0
        s_mov_b32 s10, 0x100000
        s_mov_b32 s11, 0x20000
        s_lshl_b32 s7, s2, 2
        s_add_u32 s7, s7, s3
        s_lshl_b32 s7, s7, 6
        v_mov_b32 v1, 0
        s_getreg_b32 s72, hwreg(HW_REG_XCC_ID)
        """)
        for k, s in enumerate([52, 53, 54, 55, 56, 57, 58, 59, 68, 69, 70, 71, 72, 98, 100]):
            a(f"v_mov_b32 v16, s{s}")
            a(f"buffer_store_dword v16, v1, s[8:11], s7 offen offset:{4*k}")
    a.label(f"{name}_done")
    a("s_endpgm")
    a.label(f"{name}_spin")
    a(f"""
    s_sleep 1
    buffer_load_dword v3, v23, s[80:83], s35 offen sc0 sc1
    s_waitcnt vmcnt(0)
    v_readfirstlane_b32 s36, v3
    s_cmp_eq_u32 s36, 1
    s_cbranch_scc0 {name}_spin
    s_branch {name}_spin_back
    """)
    return kernel_desc(name, 512, 102, 256)

def epilogue_stream(name, mimic, stflags, ready):
    F = []
    def a(s):
        for l in s.strip().split("\n"):
            l = l.split(";")[0].strip()
            if l: F.append(l)
    a(f"""
    s_mov_b32 s12, {f2u(-1.4426950408889634):#x}
    s_mov_b32 s13, s12
    s_mov_b32 s14, 1.0
    s_mov_b32 s15, 1.0
    s_lshr_b32 s75, s75, 6
    s_lshl_b32 s75, s75, 17
    s_lshr_b32 s74, s76, 6
    s_lshl_b32 s74, s74, 17
    s_and_b32 s73, s5, 1
    s_lshl_b32 s73, s73, 3
    s_add_u32 s74, s74, s73
    s_lshl_b32 s32, s78, 11
    s_add_u32 s32, s32, {WS_HALO - WS_FLAG2}
    s_add_u32 s33, s79, {WS_FLAG1 - WS_FLAG2}
    s_sub_u32 s34, s78, 1
    s_sub_u32 s35, s78, 125
    s_cmp_eq_u32 s3, 0
    s_cselect_b32 s34, s35, s34
    s_cmp_eq_u32 s6, 0
    s_cselect_b32 s34, s78, s34
    s_lshl_b32 s35, s34, 6
    s_add_u32 s35, s35, {WS_FLAG1 - WS_FLAG2}
    s_lshl_b32 s34, s34, 11
    s_add_u32 s34, s34, {WS_HALO - WS_FLAG2}
    v_lshlrev_b32 v2, 4, v1
    v_mov_b32 v4, 1
    """)
    def areg(t, b): return A_QKV + (t * 4 + b) * 4
    def pack(dst, t, b, tmp):
        for r in range(4): a(f"v_accvgpr_read_b32 v{tmp+r}, a{areg(t, b)+r}")
        a(f"v_cvt_pk_bf16_f32 v{dst}, v{tmp}, v{tmp+1}")
        a(f"v_cvt_pk_bf16_f32 v{dst+1}, v{tmp+2}, v{tmp+3}")
    MP, MC, M0P = 16, 24, 84
    def masks():
        a("""
        v_and_b32 v5, 15, v1
        v_lshrrev_b32 v6, 4, v1
        v_lshlrev_b32 v6, 2, v6
        v_sub_u32 v5, v5, v6
        """)
        for r in range(4):
            for base, add in ((MP, 16), (MC, 0)):
                a(f"v_add_u32 v6, {add - r}, v5")
                a(f"v_and_b32 v6, 0xfffffff1, v6")
                a(f"v_cmp_eq_u32 s[{base+2*r}:{base+2*r+1}], 0, v6")
        F.append(Gap(2))
        a("s_cmp_eq_u32 s6, 0")
        for r in range(4): a(f"s_cselect_b64 s[{M0P+2*r}:{M0P+2*r+1}], 0, s[{MP+2*r}:{MP+2*r+1}]")
    def silu_blocks(blks, outs):
        for G, U in blks:
            for h in (0, 2):
                a(f"v_pk_mul_f32 v[{U+h}:{U+h+1}], v[{G+h}:{G+h+1}], v[{U+h}:{U+h+1}]")
                a(f"v_pk_mul_f32 v[{G+h}:{G+h+1}], v[{G+h}:{G+h+1}], s[12:13]")
        for G, U in blks:
            for r in range(4): a(f"v_exp_f32 v{G+r}, v{G+r}")
        for G, U in blks:
            for h in (0, 2): a(f"v_pk_add_f32 v[{G+h}:{G+h+1}], v[{G+h}:{G+h+1}], s[14:15]")
        for G, U in blks:
            for r in range(4): a(f"v_rcp_f32 v{G+r}, v{G+r}")
        for G, U in blks:
            for h in (0, 2): a(f"v_pk_mul_f32 v[{G+h}:{G+h+1}], v[{G+h}:{G+h+1}], v[{U+h}:{U+h+1}]")
        for (G, U), O in zip(blks, outs):
            a(f"v_cvt_pk_bf16_f32 v{O}, v{G}, v{G+1}")
            a(f"v_cvt_pk_bf16_f32 v{O+1}, v{G+2}, v{G+3}")
    def publish():
        F.append(After(ready(3)))
        pack(16, 2, 3, 28); pack(18, 3, 3, 28)
        F.append(VM("buffer_store_dwordx4 v[16:19], v2, s[80:83], s32 offen sc0 sc1", ("H", 0)))
        F.append(After(ready(5)))
        pack(24, 4, 3, 28); pack(26, 5, 3, 28)
        F.append(VM("buffer_store_dwordx4 v[24:27], v2, s[80:83], s32 offen offset:1024 sc0 sc1", ("H", 1)))

    masks()
    for i in range(3):
        for hb in range(2):
            F.append(After(ready(13 + 2 * i + hb)))
            for b0 in (0, 2):
                blks = [(gu_base(6 + 2 * i + hb, b), gu_base(13 + 2 * i + hb, b)) for b in (b0, b0 + 1)]
                outs = [gu_base(13 + 2 * i, b) + 2 * hb for b in (b0, b0 + 1)]
                silu_blocks(blks, outs)
                if hb == 1:
                    for b in (b0, b0 + 1):
                        O = gu_base(13 + 2 * i, b)
                        F.append(VM(f"buffer_store_dwordx4 v[{O}:{O+3}], v7, s[48:51], s75 offen offset:{b*1024} {stflags}", ("S", 0)))
            if i == 0 and hb == 0: publish()
            if i == 0 and hb == 1:
                F.append(VW([("H", 0), ("H", 1)]))
                F.append(VM("buffer_store_dword v4, v23, s[80:83], s33 offen sc0 sc1", ("F", 0)))
        a("s_add_u32 s75, s75, 0x20000")
        if i == 1: F.append(VM("buffer_load_dword v3, v23, s[80:83], s35 offen sc0 sc1", ("G", 0)))
    QF, KF, V0, V1 = 32, 48, 68, 78
    F.append(VW([("G", 0)]))
    a(f"v_readfirstlane_b32 s36, v3")
    a("s_cmp_eq_u32 s36, 1")
    a(f"s_cbranch_scc0 {name}_spin")
    F.append(f"{name}_spin_back:")
    F.append(VM(f"buffer_load_dwordx4 v[{KF}:{KF+3}], v2, s[80:83], s34 offen sc0 sc1", ("D", 0)))
    F.append(VM(f"buffer_load_dwordx4 v[28:31], v2, s[80:83], s34 offen offset:1024 sc0 sc1", ("D", 1)))
    F.append(After(ready(19)))
    for b0 in (0, 2):
        O = gu_base(19, b0)
        silu_blocks([(gu_base(12, b0), gu_base(19, b0)), (gu_base(12, b0 + 1), gu_base(19, b0 + 1))], [O, O + 2])
        F.append(VM(f"buffer_store_dwordx2 v[{O}:{O+1}], v7, s[48:51], s74 offen offset:{b0*1024} {stflags}", ("S", 0)))
        F.append(VM(f"buffer_store_dwordx2 v[{O+2}:{O+3}], v7, s[48:51], s74 offen offset:{(b0+1)*1024} {stflags}", ("S", 0)))
    T = 96
    k = 0
    F.append(After(ready(1)))
    for b in range(4):
        for h in range(2): pack(QF + 4 * b + 2 * h, h, b, T + 4 * (k % 4)); k += 1
        if b < 3:
            for h in range(2): pack(KF + 4 * (b + 1) + 2 * h, 2 + h, b, T + 4 * (k % 4)); k += 1
            pack(V0 + 2 * (b + 1), 4, b, T + 4 * (k % 4)); k += 1
            pack(V1 + 2 * (b + 1), 5, b, T + 4 * (k % 4)); k += 1
    a(f"v_mov_b32 v{V0+8}, v24"); a(f"v_mov_b32 v{V0+9}, v25"); a(f"v_mov_b32 v{V1+8}, v26"); a(f"v_mov_b32 v{V1+9}, v27")
    F.append(VW([("D", 0), ("D", 1)]))
    a(f"v_mov_b32 v{V0}, v28"); a(f"v_mov_b32 v{V0+1}, v29"); a(f"v_mov_b32 v{V1}, v30"); a(f"v_mov_b32 v{V1+1}, v31")
    S = 112
    def kf(i): return f"v[16:19]" if i == 4 else f"v[{KF+4*i}:{KF+4*i+3}]"
    for b in range(4):
        a(f"v_mfma_f32_16x16x32_bf16 v[{S+8*b}:{S+8*b+3}], {kf(b)}, v[{QF+4*b}:{QF+4*b+3}], 0")
        a(f"v_mfma_f32_16x16x32_bf16 v[{S+8*b+4}:{S+8*b+7}], {kf(b+1)}, v[{QF+4*b}:{QF+4*b+3}], 0")
    a("v_mov_b32 v5, 0xff800000")
    c = 0.17677669529663687 * 1.4426950408889634
    a(f"s_mov_b32 s96, {f2u(c if not mimic else 1.4426950408889634):#x}")
    a(f"s_mov_b32 s38, {f2u(0.17677669529663687):#x}")
    a(f"s_mov_b32 s39, s38")
    F.append(Gap(6))
    if mimic:
        for rnd in range(2):
            for i in range(0, 32, 2):
                a(f"v_cvt_pk_bf16_f32 v{S+i+1}, v{S+i}, v{S+i+1}")
                a(f"v_lshlrev_b32 v{S+i}, 16, v{S+i+1}")
                a(f"v_and_b32 v{S+i+1}, 0xffff0000, v{S+i+1}")
                if rnd == 0: a(f"v_pk_mul_f32 v[{S+i}:{S+i+1}], v[{S+i}:{S+i+1}], s[38:39]")
    for b in range(4):
        for r in range(4):
            mp = (M0P if b == 0 else MP) + 2 * r
            a(f"v_cndmask_b32 v{S+8*b+r}, v5, v{S+8*b+r}, s[{mp}:{mp+1}]")
            a(f"v_cndmask_b32 v{S+8*b+4+r}, v5, v{S+8*b+4+r}, s[{MC+2*r}:{MC+2*r+1}]")
    MX, TT = 96, 100
    for b in range(4):
        s = S + 8 * b
        a(f"v_max3_f32 v{MX+b}, v{s}, v{s+1}, v{s+2}")
        a(f"v_max3_f32 v{TT+b}, v{s+3}, v{s+4}, v{s+5}")
    for b in range(4):
        s = S + 8 * b
        a(f"v_max3_f32 v{MX+b}, v{MX+b}, v{s+6}, v{s+7}")
    for b in range(4): a(f"v_max_f32 v{MX+b}, v{MX+b}, v{TT+b}")
    def allred(op):
        for sw in ("v_permlane16_swap_b32", "v_permlane32_swap_b32"):
            for b in range(4): a(f"v_mov_b32 v{TT+b}, v{MX+b}")
            F.append(Gap(2))
            for b in range(4): a(f"{sw} v{MX+b}, v{TT+b}")
            F.append(Gap(1))
            for b in range(4): a(f"{op} v{MX+b}, v{MX+b}, v{TT+b}")
    allred("v_max_f32")
    for b in range(4): a(f"v_mul_f32 v{MX+b}, s96, v{MX+b}")
    for b in range(4):
        for r in range(8): a(f"v_fma_f32 v{S+8*b+r}, v{S+8*b+r}, s96, -v{MX+b}")
    for i in range(32): a(f"v_exp_f32 v{S+i}, v{S+i}")
    for b in range(4):
        s = S + 8 * b
        a(f"v_pk_add_f32 v[{104+2*b}:{105+2*b}], v[{s}:{s+1}], v[{s+2}:{s+3}]")
    for r in (4, 6):
        for b in range(4):
            s = S + 8 * b
            a(f"v_pk_add_f32 v[{104+2*b}:{105+2*b}], v[{104+2*b}:{105+2*b}], v[{s+r}:{s+r+1}]")
    for b in range(4): a(f"v_add_f32 v{MX+b}, v{104+2*b}, v{105+2*b}")
    allred("v_add_f32")
    for b in range(4): a(f"v_rcp_f32 v{104+2*b}, v{MX+b}")
    for b in range(4):
        for r in range(0, 8, 2): a(f"v_pk_mul_f32 v[{S+8*b+r}:{S+8*b+r+1}], v[{S+8*b+r}:{S+8*b+r+1}], v[{104+2*b}:{105+2*b}] op_sel_hi:[1,0]")
    P = QF
    for b in range(4):
        for r in range(4): a(f"v_cvt_pk_bf16_f32 v{P+4*b+r}, v{S+8*b+2*r}, v{S+8*b+2*r+1}")
    O = S
    F.append(Gap(2))
    for b in range(4):
        a(f"v_mfma_f32_16x16x32_bf16 v[{O+8*b}:{O+8*b+3}], v[{V0+2*b}:{V0+2*b+3}], v[{P+4*b}:{P+4*b+3}], 0")
        a(f"v_mfma_f32_16x16x32_bf16 v[{O+8*b+4}:{O+8*b+7}], v[{V1+2*b}:{V1+2*b+3}], v[{P+4*b}:{P+4*b+3}], 0")
    a("s_add_u32 s75, s5, 112")
    a("s_lshl_b32 s75, s75, 17")
    F.append(Gap(2))
    OP = KF
    for b in range(4):
        for r in range(4): a(f"v_cvt_pk_bf16_f32 v{OP+4*b+r}, v{O+8*b+2*r}, v{O+8*b+2*r+1}")
        F.append(VM(f"buffer_store_dwordx4 v[{OP+4*b}:{OP+4*b+3}], v7, s[48:51], s75 offen offset:{b*1024} {stflags}", ("S", 0)))
    return F
```

```python
from asmgen import *
from sched import *
from k_ln import WS_XN, WS_HO, HO_BYTES, WS_DBG
from k_g1 import f2u

WS_EX = 24 << 20
WS_FLAG = 33 << 20

def gen_g2(a, name="g2_kernel", stamp=False, nbuf=5, xr=8, LA=6, split=False, pf=True, pfd=3, abl=()):
    RING = 8
    NBF = 8 if split else 4
    NBS = 4
    NF = 56 if split else 112
    NS = 32
    STG = 4 * (NBF // 2) * 1024
    NBUF = nbuf; XR = xr
    V_F = 32; V_S = V_F + NBF * 8; V_END = V_S + 32
    XV = V_END
    PV = XV + 16
    T = PV + 32
    NV = T + 32
    A_X = 0; A_W = XR * 8; NA = A_W + RING * 4
    def x_reg(s, b): return ar(A_X + ((s % XR) * 2 + b) * 4, 4)
    def w_reg(tau): return A_W + (tau % RING) * 4
    NSTEP = NF + NS
    def nb_of(s): return NBF if s < NF else NBS
    blocks = [(s, t) for s in range(NSTEP + 4) for t in range(nb_of(s))]
    first_tau = {}
    for i, (s, t) in enumerate(blocks): first_tau.setdefault(s, i)

    kernel_header(a, name)
    a(f"""
    s_cmp_ge_u32 s2, 256
    s_cbranch_scc1 {name}_done
    """)
    if stamp:
        a("s_memtime s[52:53]"); a("s_memrealtime s[68:69]")
    a(f"""
    s_load_dwordx2 s[60:61], s[0:1], 48     ; w_down
    s_load_dwordx2 s[62:63], s[0:1], 72     ; ws
    s_load_dwordx2 s[64:65], s[0:1], 16     ; wo
    s_load_dwordx2 s[66:67], s[0:1], 0      ; x
    s_load_dwordx2 s[72:73], s[0:1], 56     ; out
    v_lshrrev_b32 v15, 6, v0
    v_and_b32 v1, 63, v0
    v_readfirstlane_b32 s3, v15
    s_bfe_u32 s74, s2, 0x20001          ; xcd>>1
    s_lshl_b32 s4, s74, 2
    s_bfe_u32 s5, s2, 0x20003
    s_add_u32 s4, s4, s5                ; m
    s_and_b32 s75, s2, 1                ; c
    s_lshr_b32 s6, s2, 5                ; nn
    """)
    if split:
        a("s_lshl_b32 s5, s6, 1"); a("s_add_u32 s5, s5, s75")
    else:
        a("s_lshl_b32 s5, s75, 3"); a("s_add_u32 s5, s5, s6")
    a(f"""
    s_lshl_b32 s6, s4, 3
    s_lshl_b32 s7, s3, 1
    s_add_u32 s6, s6, s7                ; tb0 = m*8 + 2w
    v_lshrrev_b32 v16, 4, v1
    v_and_b32 v18, 1, v16
    v_lshlrev_b32 v18, 1, v18
    v_and_b32 v19, 3, v1
    v_xor_b32 v18, v18, v19
    v_lshlrev_b32 v18, 4, v18
    v_lshrrev_b32 v17, 2, v1
    v_lshl_add_u32 v2, v17, 11, v18
    s_lshl_b32 s7, s5, 7
    v_add_u32 v2, s7, v2
    v_xor_b32 v3, 128, v2
    s_lshl_b32 s7, s6, 10
    v_lshl_add_u32 v7, v1, 4, s7
    v_lshlrev_b32 v9, 8, v16
    v_bfe_u32 v17, v1, 2, 2
    v_lshl_add_u32 v9, v17, 6, v9
    v_lshl_add_u32 v9, v19, 3, v9
    v_and_b32 v17, 1, v16
    v_lshl_add_u32 v9, v17, 5, v9
    v_xor_b32 v10, 32, v9
    v_mov_b32 v12, v9
    v_mov_b32 v13, v10
    s_lshl_b32 s33, s3, 15              ; w*16 rows
    s_mul_i32 s34, s75, {NF*32*2048 if split else 0}
    s_add_u32 s32, s33, s34             ; W soffset
    s_mul_i32 s42, s75, {NF*131072 if split else 0}
    s_mul_i32 s46, s3, {(NBF//2)*1024}
    s_mul_i32 s35, s3, {(NBS//2)*1024}
    s_sub_u32 s35, s35, s46
    s_add_u32 s47, s46, {NBUF*STG}
    """)
    if pf:
        PW = 8
        a(f"""
        s_lshr_b32 s76, s2, 3
        s_lshl_b32 s76, s76, 1
        s_and_b32 s77, s3, 1
        s_add_u32 s76, s76, s77         ; r
        s_lshr_b32 s77, s76, 3
        s_lshl_b32 s77, s77, 17
        s_and_b32 s78, s76, 7
        s_lshl_b32 s78, s78, 12
        s_add_u32 s77, s77, s78
        s_lshl_b32 s78, s74, 15
        s_add_u32 s77, s77, s78
        v_lshl_add_u32 v4, v1, 6, s77
        s_lshl_b32 s77, s76, 13         ; 4r rows
        v_lshl_add_u32 v5, v16, 11, s77
        v_and_b32 v17, 15, v1
        """)
        if split:
            a("""
            v_lshl_add_u32 v6, v17, 7, v5   ; f pattern
            v_lshrrev_b32 v18, 1, v17
            v_lshl_add_u32 v5, v18, 8, v5
            v_and_b32 v18, 1, v17
            v_lshl_add_u32 v5, v18, 6, v5
            s_lshl_b32 s77, s75, 7
            v_add_u32 v5, s77, v5           ; s pattern
            """)
        else:
            a("""
            v_lshl_add_u32 v5, v17, 6, v5
            s_lshl_b32 s77, s75, 10
            v_add_u32 v5, s77, v5
            v_mov_b32 v6, v5
            """)
        a("""
        s_cmp_lt_u32 s3, 2
        s_cselect_b64 vcc, -1, 0
        s_nop 1
        v_cndmask_b32 v6, v6, v4, vcc
        v_cndmask_b32 v5, v5, v4, vcc
        """)
    a(f"""
    s_waitcnt lgkmcnt(0)
    s_add_u32 s8, s62, {WS_HO}
    s_addc_u32 s9, s63, 0
    s_mov_b32 s10, {HO_BYTES}
    s_mov_b32 s11, 0x20000
    s_mov_b32 s12, s60
    s_mov_b32 s13, s61
    s_mov_b32 s14, {3584*2048}
    s_mov_b32 s15, 0x20000
    """)
    if pf:
        a(f"""
        s_cmp_lt_u32 s3, 2
        s_cselect_b32 s24, s8, s60
        s_cselect_b32 s25, s9, s61
        s_cselect_b32 s26, s10, s14
        s_mov_b32 s27, 0x20000
        s_cselect_b32 s28, s8, s64
        s_cselect_b32 s29, s9, s65
        s_cselect_b32 s30, s10, {1024*2048}
        s_mov_b32 s31, 0x20000
        s_cselect_b32 s36, s42, s34
        s_mov_b32 s37, {PW*32*2048}
        s_cselect_b32 s37, {PW*131072}, s37
        s_cselect_b32 s38, {112*131072}, 0
        """)
    def pfi(win):
        if win * 8 >= NSTEP: return []
        if win * 8 < NF:
            return [VM("buffer_load_dword v8, v6, s[24:27], s36 offen", ("P", win)), "s_add_u32 s36, s36, s37"]
        return [VM("buffer_load_dword v8, v5, s[28:31], s38 offen", ("P", win)), "s_add_u32 s38, s38, s37"]
    def dmas(sg):
        nb = nb_of(2 * sg)
        out = []
        for q in range(nb // 2):
            v = 3 if q >= 2 else 2
            qq = q & 1
            base = "s44" if nb == NBF else "s39"
            out.append((f"s_add_u32 m0, {base}, {q*1024 - qq*64}",
                        VM(f"buffer_load_dwordx4 v{v}, s[12:15], s32 offen offset:{qq*64} lds", ("W", sg))))
        return out
    def xload(s, b): return VM(f"buffer_load_dwordx4 {x_reg(s, b)}, v7, s[8:11], s42 offen offset:{b*1024}", ("X", s))
    def xadv(s):
        if s == NF - 1 and split: return f"s_mov_b32 s42, {112*131072}"
        return "s_add_u32 s42, s42, 0x20000"
    def trread(tau, p):
        s, t = blocks[tau]; nb = nb_of(s)
        off = (((s % 2) * 2 + p) * (nb // 2) + (t >> 1)) * 1024
        return f"ds_read_b64_tr_b16 {ar(w_reg(tau) + 2*p, 2)}, v{12 + (t & 1)} offset:{off}"
    def wadv(sg):
        r = [f"s_add_u32 s44, s44, {STG}", "s_cmp_ge_u32 s44, s47", "s_cselect_b32 s44, s46, s44"]
        if sg == NF // 2 - 1:
            r += ["s_mov_b32 s12, s64", "s_mov_b32 s13, s65", f"s_mov_b32 s14, {1024*2048}", "s_mov_b32 s32, s33"]
        else: r = ["s_add_u32 s32, s32, 0x20000"] + r
        if sg >= NF // 2 - 1 and NBF != NBS: r.append("s_add_u32 s39, s44, s35")
        return r
    tr = Trace()
    pro = ["s_mov_b32 s44, s46"]
    if pf:
        for wn in range(pfd): pro += pfi(wn)
    for sg in range(max(NBUF - 1, (XR) // 2)):
        if sg < NBUF - 1:
            for m0, d in dmas(sg): pro += [m0, "s_nop 0", d]
            pro += wadv(sg)
        for s in (2 * sg, 2 * sg + 1):
            if s < XR - 1: pro += [xload(s, 0), xload(s, 1), xadv(s)]
    for r in range(V_F, V_END): pro.append(f"v_mov_b32 v{r}, 0")
    pro += f"""
    s_mov_b32 s16, s66
    s_mov_b32 s17, s67
    s_mov_b32 s18, 0x400000
    s_mov_b32 s19, 0x20000
    s_mov_b32 s20, s72
    s_mov_b32 s21, s73
    s_mov_b32 s22, 0x400000
    s_mov_b32 s23, 0x20000
    v_and_b32 v14, 15, v1
    v_lshlrev_b32 v14, 11, v14
    v_bfe_u32 v17, v1, 4, 1
    v_lshl_add_u32 v14, v17, 5, v14
    v_lshrrev_b32 v17, 5, v1
    v_lshl_add_u32 v14, v17, 4, v14
    s_lshl_b32 s40, s6, 15
    s_lshl_b32 s41, s5, 7
    s_add_u32 s40, s40, s41
    s_add_u32 s41, s40, 0x8000
    """.strip().split("\n")
    if split:
        pro += f"""
        s_add_u32 s48, s62, {WS_EX}
        s_addc_u32 s49, s63, 0
        s_mov_b32 s50, {WS_FLAG - WS_EX + 65536}
        s_mov_b32 s51, 0x20000
        s_lshl_b32 s80, s2, 2
        s_add_u32 s80, s80, s3
        s_xor_b32 s81, s80, 4
        s_lshl_b32 s82, s80, 6
        s_add_u32 s82, s82, {WS_FLAG - WS_EX}
        s_lshl_b32 s83, s81, 6
        s_add_u32 s83, s83, {WS_FLAG - WS_EX}
        s_lshl_b32 s80, s80, 13
        s_lshl_b32 s81, s81, 13
        s_add_u32 s84, s80, 4096
        s_add_u32 s85, s81, 4096
        v_lshlrev_b32 v11, 4, v1
        v_mov_b32 v20, 0
        v_mov_b32 v21, 1
        """.strip().split("\n")
    pro += ["s_mov_b32 s43, 0", VW([("W", 0)]), "s_barrier"]
    for tau in range(LA): pro += [trread(tau, 0), trread(tau, 1)]
    tr.add("pro", pro)

    NSTG = NSTEP // 2
    ev = {}
    def add_ev(s, t, i, items): ev.setdefault((s, t, i), []).extend(items)
    for q in range(4):
        b, tp = q // 2, q % 2
        r = XV + q * 4
        add_ev(NSTEP - 6 + q, 1, 1, [VM(f"buffer_load_dwordx4 v[{r}:{r+3}], v14, s[16:19], s{40+b} offen offset:{tp*64}", ("R", q))])
    if split:
        for q in range(8):
            r = V_F + 32 + q * 4
            add_ev(NF + 1 + q // 2, 1 + 2 * (q % 2), 1,
                   [VM(f"buffer_store_dwordx4 v[{r}:{r+3}], v11, s[48:51], s{80 if q < 4 else 84} offen offset:{(q%4)*1024} sc0 sc1", ("E", q))])
        SF = NF + 4 + XR
        add_ev(SF, 1, 1, [VW([("E", q) for q in range(8)]), VM("buffer_store_dword v21, v20, s[48:51], s82 offen sc0 sc1", ("F", 0))])
        SP = NSTEP - 12
        add_ev(SP, 1, 1, [VM("buffer_load_dword v22, v20, s[48:51], s83 offen sc0 sc1", ("G", 0))])
        SC = NSTEP - 7
        add_ev(SC, 1, 1, [VW([("G", 0)]), "v_readfirstlane_b32 s86, v22", "s_cmp_eq_u32 s86, 1", f"s_cbranch_scc0 {name}_spin", f"{name}_spin_back:"])
        for q in range(8):
            r = PV + q * 4
            add_ev(SC + (q + 1) // 2, 1 + 2 * ((q + 1) % 2), 1 if (q + 1) % 2 else 0,
                   [VM(f"buffer_load_dwordx4 v[{r}:{r+3}], v11, s[48:51], s{81 if q < 4 else 85} offen offset:{(q%4)*1024} sc0 sc1", ("D", q))])
    def step_code(s):
        R = []
        if stamp and s == NF: R += ["s_memtime s[90:91]", "s_waitcnt lgkmcnt(0)"]
        nb = nb_of(s); sg = s // 2
        accb = V_F if s < NF else V_S
        st0 = first_tau[2 * sg]; stn = first_tau[2 * sg + 2]
        BAR = stn - LA
        wsg = sg + NBUF - 1
        dl = dmas(wsg) if wsg < NSTG else []
        avail = list(range(BAR + 1, stn))
        pos = {}
        if dl:
            stepw = max(1, (len(avail) - 1) // len(dl))
            for q in range(len(dl)): pos[avail[min(q * stepw, len(avail) - 2)]] = q
            assert len(pos) == len(dl), (avail, dl)
            advpos = max(pos) + 1
        for t in range(nb):
            tau = first_tau[s] + t
            fill = [[], []]
            if tau == BAR and sg + 1 < NSTG: fill[0] += [VW([("W", sg + 1)]), "s_barrier"]
            if blocks[tau + LA][0] < NSTEP:
                fill[0].append(trread(tau + LA, 0)); fill[1].append(trread(tau + LA, 1))
            if tau == BAR - 1: fill[1] += ["v_add_u32 v12, s43, v9", "v_add_u32 v13, s43, v10"]
            if tau == BAR - 2: fill[0] += [f"s_add_u32 s43, s43, {STG}", f"s_cmp_ge_u32 s43, {NBUF*STG}", "s_cselect_b32 s43, 0, s43"]
            if tau in pos:
                fill[0].append(dl[pos[tau]][0]); fill[1].append(dl[pos[tau]][1])
            if dl and tau == advpos: fill[0] += wadv(wsg)
            sx = s + XR - 1
            if sx < NSTEP:
                if t == 0: fill[1].append(xload(sx, 0))
                if t == nb // 2: fill[1] += [xload(sx, 1), xadv(sx)]
            if pf and s % 8 == 0 and t == 1: fill[1] += pfi(s // 8 + pfd)
            for i in range(2): fill[i] += ev.get((s, t, i), [])
            rem = min(LA, first_tau[NSTEP] - tau)
            lg = f"lgkmcnt({max(0, 2*(rem-2))})"
            if t == 0: R.append(VW([("X", s)], lg))
            elif tau % 2 == 0: R.append(f"s_waitcnt {lg}")
            for i in range(2):
                b = i if t % 2 == 0 else 1 - i
                c = vr(accb + (t * 2 + b) * 4, 4)
                R.append(f"v_mfma_f32_16x16x32_bf16 {c}, {ar(w_reg(tau), 4)}, {x_reg(s, b)}, {c}")
                R += fill[i]
        return R
    def txt(recs): return tuple(r.text if isinstance(r, VM) else ("W" + r.extra if isinstance(r, VW) else r) for r in recs)
    seq = []
    IT = XR if XR % 8 == 0 else XR * 4
    s = 0
    while s < NSTEP:
        n = min(IT, (NF if s < NF else NSTEP) - s)
        recs = []
        for ss in range(s, s + n): recs += step_code(ss)
        key = txt(recs)
        if seq and seq[-1][1] == key: sid = seq[-1][0]
        else: sid = f"b{len(seq)}"
        seq.append((sid, key)); tr.add(sid, recs)
        s += n
    tr.add("epi", [VW([("R", q) for q in range(4)] + [("D", q) for q in range(8)])])
    res = tr.resolve()
    for l in res["pro"]: a(l)
    if stamp: a("s_memtime s[54:55]"); a("s_memrealtime s[98:99]"); a("s_waitcnt lgkmcnt(0)")
    done = set()
    for sid, _ in seq:
        if sid in done: continue
        done.add(sid)
        cnt = sum(1 for x, _ in seq if x == sid)
        lab = f"{name}_L{len(done)}"
        if cnt > 1:
            a(f"s_mov_b32 s45, {cnt}")
            a.raw(".p2align 6")
            a.label(lab)
        for l in res[sid]:
            if "nomfma" in abl and l.startswith("v_mfma"): continue
            if "notr" in abl and l.startswith("ds_read"): continue
            if "novm" in abl and l.startswith("buffer_load") and "sc1" not in l: continue
            if "nobar" in abl and l.startswith("s_barrier"): continue
            if "wrap" in abl and l.startswith("s_add_u32 s42, s42"): a(l); a("s_and_b32 s42, s42, 0x1fffff"); continue
            if "wrap" in abl and l.startswith("s_add_u32 s32, s32"): a(l); a("s_and_b32 s32, s32, 0xfffff"); continue
            a(l)
        if cnt > 1:
            a("s_sub_u32 s45, s45, 1"); a("s_cmp_lg_u32 s45, 0"); a(f"s_cbranch_scc1 {lab}")
    if stamp: a("s_memtime s[56:57]"); a("s_memrealtime s[100:101]"); a("s_waitcnt lgkmcnt(0)")
    a(f"s_mov_b32 s76, {f2u(-1.4426950408889634):#x}")
    for l in res["epi"]: a(l)
    def rnd(lo, n):
        for i in range(lo, lo + n, 2):
            a(f"v_cvt_pk_bf16_f32 v{i+1}, v{i}, v{i+1}")
            a(f"v_lshlrev_b32 v{i}, 16, v{i+1}")
            a(f"v_and_b32 v{i+1}, 0xffff0000, v{i+1}")
    if split:
        for i in range(0, 32, 2): a(f"v_pk_add_f32 v[{V_F+i}:{V_F+i+1}], v[{V_F+i}:{V_F+i+1}], v[{PV+i}:{PV+i+1}]")
    rnd(V_F, 32)
    for i in range(32): a(f"v_mul_f32 v{T+i}, s76, v{V_F+i}")
    for i in range(32): a(f"v_exp_f32 v{T+i}, v{T+i}")
    rnd(V_S, 32)
    for i in range(32): a(f"v_add_f32 v{T+i}, 1.0, v{T+i}")
    for i in range(32): a(f"v_rcp_f32 v{T+i}, v{T+i}")
    for q in range(4):
        r = XV + q * 4
        a(f"v_permlane16_swap_b32 v{r}, v{r+2}")
        a(f"v_permlane16_swap_b32 v{r+1}, v{r+3}")
    for i in range(0, 32, 2): a(f"v_pk_mul_f32 v[{V_F+i}:{V_F+i+1}], v[{V_F+i}:{V_F+i+1}], v[{T+i}:{T+i+1}]")
    rnd(V_F, 32)
    for i in range(0, 32, 2): a(f"v_pk_mul_f32 v[{V_F+i}:{V_F+i+1}], v[{V_F+i}:{V_F+i+1}], v[{V_S+i}:{V_S+i+1}]")
    rnd(V_F, 32)
    k = 0
    for b in range(2):
        for tp in range(2):
            r = XV + (b * 2 + tp) * 4
            for h in range(2):
                c = V_F + ((2 * tp + h) * 2 + b) * 4
                for e in range(2):
                    src = r + 2 * h + e; tt = T + 2 * (k % 16); k += 1
                    a(f"v_lshlrev_b32 v{tt}, 16, v{src}")
                    a(f"v_and_b32 v{tt+1}, 0xffff0000, v{src}")
                    a(f"v_pk_add_f32 v[{tt}:{tt+1}], v[{tt}:{tt+1}], v[{c+2*e}:{c+2*e+1}]")
                    a(f"v_cvt_pk_bf16_f32 v{src}, v{tt}, v{tt+1}")
            a("s_nop 1")
            a(f"v_permlane16_swap_b32 v{r}, v{r+2}")
            a(f"v_permlane16_swap_b32 v{r+1}, v{r+3}")
            a("s_nop 1")
            a(f"buffer_store_dwordx4 v[{r}:{r+3}], v14, s[20:23], s{40+b} offen offset:{tp*64}")
    if stamp:
        a("s_waitcnt vmcnt(0)")
        a("s_memtime s[58:59]")
        a("s_memrealtime s[70:71]")
        a(f"""
        s_waitcnt lgkmcnt(0)
        s_add_u32 s8, s62, {WS_DBG + 0x10000}
        s_addc_u32 s9, s63, 0
        s_mov_b32 s10, 0x100000
        s_mov_b32 s11, 0x20000
        s_lshl_b32 s7, s2, 2
        s_add_u32 s7, s7, s3
        s_lshl_b32 s7, s7, 6
        v_mov_b32 v1, 0
        s_getreg_b32 s72, hwreg(HW_REG_XCC_ID)
        """)
        for k, s in enumerate([52, 53, 54, 55, 56, 57, 58, 59, 68, 69, 70, 71, 72, 98, 100, 90]):
            a(f"v_mov_b32 v16, s{s}")
            a(f"buffer_store_dword v16, v1, s[8:11], s7 offen offset:{4*k}")
    a.label(f"{name}_done")
    a("s_endpgm")
    if split:
        a.label(f"{name}_spin")
        a(f"""
        s_sleep 1
        buffer_load_dword v22, v20, s[48:51], s83 offen sc0 sc1
        s_waitcnt vmcnt(0)
        v_readfirstlane_b32 s86, v22
        s_cmp_eq_u32 s86, 1
        s_cbranch_scc0 {name}_spin
        s_branch {name}_spin_back
        """)
    acc_off = (NV + 3) // 4 * 4
    return kernel_desc(name, acc_off + NA, 102, acc_off), NBUF * STG
```

```python
from asmgen import *

WS_XN = 0
WS_HO = 4 << 20
HO_BYTES = 144 * 128 * 1024
WS_DBG = 64 << 20

def xred(a, v, t, op="v_add_f32"):
    a(f"s_nop 1")
    a(f"{op}_dpp {v}, {v}, {v} row_ror:8 row_mask:0xf bank_mask:0xf")
    a(f"v_mov_b32 {t}, {v}")
    a(f"s_nop 1")
    a(f"v_permlane16_swap_b32 {v}, {t}")
    a(f"{op} {v}, {v}, {t}")
    a(f"v_mov_b32 {t}, {v}")
    a(f"s_nop 1")
    a(f"v_permlane32_swap_b32 {v}, {t}")
    a(f"{op} {v}, {v}, {t}")

def gen_ln(a, name="ln_kernel", stamp=False, pf=0, cpf=True):
    kernel_header(a, name)
    a(f"""
    s_cmp_ge_u32 s2, 256
    s_cbranch_scc1 {name}_done
    {"s_memrealtime s[20:21]" if stamp else ""}
    s_load_dwordx2 s[4:5], s[0:1], 0
    s_load_dwordx2 s[6:7], s[0:1], 72
    v_and_b32 v1, 7, v0                 ; j
    v_bfe_u32 v2, v0, 3, 3              ; p
    v_lshrrev_b32 v3, 6, v0             ; w
    v_lshlrev_b32 v4, 11, v1            ; j*2048
    v_lshl_add_u32 v4, v3, 9, v4        ; + w*512
    v_lshl_add_u32 v4, v2, 4, v4        ; + p*16
    s_lshl_b32 s3, s2, 14               ; wg*16384
    s_waitcnt lgkmcnt(0)
    s_mov_b32 s8, s4
    s_mov_b32 s9, s5
    s_mov_b32 s10, 0x400000
    s_mov_b32 s11, 0x20000
    buffer_load_dwordx4 v[8:11], v4, s[8:11], s3 offen
    buffer_load_dwordx4 v[12:15], v4, s[8:11], s3 offen offset:128
    buffer_load_dwordx4 v[16:19], v4, s[8:11], s3 offen offset:256
    buffer_load_dwordx4 v[20:23], v4, s[8:11], s3 offen offset:384
    s_mov_b32 s12, s6
    s_mov_b32 s13, s7
    s_mov_b32 s14, 0x400000
    s_mov_b32 s15, 0x20000
    v_lshrrev_b32 v5, 2, v2
    v_lshl_add_u32 v5, v3, 3, v5
    v_lshlrev_b32 v5, 17, v5
    v_and_b32 v6, 3, v2
    v_lshl_add_u32 v5, v6, 8, v5
    v_lshl_add_u32 v5, v1, 4, v5
    s_lshr_b32 s16, s2, 1
    s_lshl_b32 s16, s16, 10
    s_and_b32 s17, s2, 1
    s_lshl_b32 s17, s17, 7
    s_add_u32 s16, s16, s17
    s_add_u32 s17, s16, 0x40000
    s_add_u32 s18, s16, 0x80000
    s_add_u32 s19, s16, 0xc0000
    s_add_u32 s44, s6, {36 << 20}
    s_addc_u32 s45, s7, 0
    s_mov_b32 s46, 65536
    s_mov_b32 s47, 0x20000
    s_lshl_b32 s3, s2, 8
    v_lshlrev_b32 v6, 6, v3
    v_mov_b32 v7, 0
    buffer_store_dword v7, v6, s[44:47], s3 offen
    v_lshlrev_b32 v6, 4, v1             ; j*16 (read)
    v_lshl_add_u32 v7, v3, 2, v6        ; j*16 + w*4 (write)
    """)
    if pf:
        a(f"""
        s_load_dwordx2 s[28:29], s[0:1], 8
        s_load_dwordx4 s[32:35], s[0:1], 32
        v_readfirstlane_b32 s26, v3
        s_and_b32 s27, s2, 7                ; xcd
        s_lshr_b32 s36, s2, 3               ; idx
        v_min_u32 v70, 6, v1                ; gate/up: line index (lane&7) clamped to 6
        v_lshlrev_b32 v70, 7, v70
        v_mul_u32_u24 v71, 7168, v2
        v_add_u32 v70, v70, v71             ; row (lane>>3)*7168 + line*128
        v_min_u32 v68, 5, v1
        v_lshrrev_b32 v69, 1, v68
        v_lshlrev_b32 v69, 11, v69          ; part*2048
        v_and_b32 v68, 1, v68
        v_lshl_add_u32 v69, v68, 7, v69
        v_mul_u32_u24 v71, 6144, v2
        v_add_u32 v69, v69, v71
        s_cmp_eq_u32 s26, 0
        s_cselect_b64 vcc, -1, 0
        s_cselect_b32 s37, 6144, 7168
        s_cselect_b32 s38, 256, 896
        v_cndmask_b32 v70, v70, v69, vcc
        s_mul_i32 s38, s38, s27             ; column bytes
        s_lshl_b32 s39, s36, 3
        s_mul_i32 s39, s39, s37
        s_add_u32 s38, s38, s39
        s_lshl_b32 s42, s37, 10             ; size
        s_lshl_b32 s37, s37, 8              ; 256 rows
        s_lshl_b32 s39, s36, 13
        v_and_b32 v69, 63, v0
        v_lshlrev_b32 v69, 7, v69
        s_getpc_b64 s[30:31]
{name}_pc:
        s_cmp_eq_u32 s26, 3
        s_cselect_b64 vcc, -1, 0
        s_cselect_b32 s42, {"code_end - " + name + "_pc" if cpf else "0"}, s42
        s_cselect_b32 s38, s39, s38
        s_cselect_b32 s37, 0x100000, s37
        v_cndmask_b32 v70, v70, v69, vcc
        s_mov_b32 s43, 0x20000
        s_waitcnt lgkmcnt(0)
        s_cmp_eq_u32 s26, 0
        s_cselect_b32 s40, s28, s32
        s_cselect_b32 s41, s29, s33
        s_cmp_eq_u32 s26, 2
        s_cselect_b32 s40, s34, s40
        s_cselect_b32 s41, s35, s41
        s_cmp_eq_u32 s26, 3
        s_cselect_b32 s40, s30, s40
        s_cselect_b32 s41, s31, s41
        """.replace("s_cselect_b32 s37, 6144, 7168", "s_movk_i32 s37, 7168\ns_cselect_b32 s37, 6144, s37").replace("s_cselect_b32 s38, 256, 896", "s_movk_i32 s38, 896\ns_cselect_b32 s38, 256, s38"))
        for i in range(pf):
            a("buffer_load_dword v71, v70, s[40:43], s38 offen")
            a("s_add_u32 s38, s38, s37")
    for i in range(4):
        a(f"s_waitcnt vmcnt({3-i+pf+1})")
        if i == 0 and stamp: a("s_memrealtime s[22:23]")
        for r in range(4):
            src = 8 + 4 * i + r
            d = 24 + 2 * (4 * i + r)
            a(f"v_lshlrev_b32 v{d}, 16, v{src}")
            a(f"v_and_b32 v{d+1}, 0xffff0000, v{src}")
    a("v_pk_add_f32 v[56:57], v[24:25], v[26:27]")
    a("v_pk_add_f32 v[58:59], v[28:29], v[30:31]")
    for i in range(4, 16, 2):
        a(f"v_pk_add_f32 v[56:57], v[56:57], v[{24+2*i}:{25+2*i}]")
        a(f"v_pk_add_f32 v[58:59], v[58:59], v[{26+2*i}:{27+2*i}]")
    a("v_pk_add_f32 v[56:57], v[56:57], v[58:59]")
    a("v_add_f32 v56, v56, v57")
    xred(a, "v56", "v57")
    a("""
    ds_write_b32 v7, v56
    s_waitcnt lgkmcnt(0)
    s_barrier
    ds_read_b128 v[60:63], v6
    s_waitcnt lgkmcnt(0)
    v_add_f32 v60, v60, v61
    v_add_f32 v62, v62, v63
    v_add_f32 v60, v60, v62
    v_mul_f32 v60, 0x3a800000, v60
    v_mov_b32 v61, v60
    """)
    a("v_pk_add_f32 v[56:57], v[24:25], v[60:61] neg_lo:[0,1] neg_hi:[0,1]")
    a("v_pk_mul_f32 v[58:59], v[56:57], v[56:57]")
    a("v_pk_add_f32 v[56:57], v[26:27], v[60:61] neg_lo:[0,1] neg_hi:[0,1]")
    a("v_pk_mul_f32 v[62:63], v[56:57], v[56:57]")
    for i in range(2, 16):
        acc = "v[58:59]" if i % 2 == 0 else "v[62:63]"
        t = "v[56:57]" if i % 2 == 0 else "v[64:65]"
        a(f"v_pk_add_f32 {t}, v[{24+2*i}:{25+2*i}], v[60:61] neg_lo:[0,1] neg_hi:[0,1]")
        a(f"v_pk_fma_f32 {acc}, {t}, {t}, {acc}")
    a("v_pk_add_f32 v[58:59], v[58:59], v[62:63]")
    a("v_add_f32 v58, v58, v59")
    xred(a, "v58", "v59")
    a("""
    ds_write_b32 v7, v58 offset:128
    s_waitcnt lgkmcnt(0)
    s_barrier
    ds_read_b128 v[64:67], v6 offset:128
    v_cvt_pk_bf16_f32 v60, v60, v60
    v_lshlrev_b32 v60, 16, v60
    v_mov_b32 v61, v60
    s_waitcnt lgkmcnt(0)
    v_add_f32 v64, v64, v65
    v_add_f32 v66, v66, v67
    v_add_f32 v64, v64, v66
    v_mul_f32 v64, 0x3a800000, v64      ; var
    v_cvt_pk_bf16_f32 v64, v64, v64
    v_lshlrev_b32 v64, 16, v64
    v_add_f32 v64, 0x3727c5ac, v64      ; + 1e-5
    v_cvt_pk_bf16_f32 v64, v64, v64
    v_lshlrev_b32 v64, 16, v64
    v_sqrt_f32 v64, v64
    s_nop 0
    v_cvt_pk_bf16_f32 v64, v64, v64
    v_lshlrev_b32 v64, 16, v64
    v_rcp_f32 v64, v64
    s_nop 0
    v_mov_b32 v65, v64
    """)
    for i in range(4):
        for r in range(4):
            q = 4 * i + r
            d = 24 + 2 * q
            a(f"v_pk_add_f32 v[{d}:{d+1}], v[{d}:{d+1}], v[60:61] neg_lo:[0,1] neg_hi:[0,1]")
            a(f"v_cvt_pk_bf16_f32 v{8+q}, v{d}, v{d+1}")
            a(f"v_lshlrev_b32 v{d}, 16, v{8+q}")
            a(f"v_and_b32 v{d+1}, 0xffff0000, v{8+q}")
            a(f"v_pk_mul_f32 v[{d}:{d+1}], v[{d}:{d+1}], v[64:65]")
            a(f"v_cvt_pk_bf16_f32 v{8+q}, v{d}, v{d+1}")
        a(f"buffer_store_dwordx4 v[{8+4*i}:{11+4*i}], v5, s[12:15], s{16+i} offen")
    if stamp:
        a(f"""
        s_memrealtime s[24:25]
        s_waitcnt vmcnt(0)
        s_memrealtime s[26:27]
        s_waitcnt lgkmcnt(0)
        s_add_u32 s8, s6, {WS_DBG + 0x20000}
        s_addc_u32 s9, s7, 0
        s_mov_b32 s10, 0x100000
        s_lshl_b32 s3, s2, 4
        v_mov_b32 v1, 0
        v_mov_b32 v8, s20
        v_mov_b32 v9, s22
        v_mov_b32 v10, s24
        v_mov_b32 v11, s26
        buffer_store_dwordx4 v[8:11], v1, s[8:11], s3 offen
        """)
    a.label(f"{name}_done")
    a("s_endpgm")
    return kernel_desc(name, 72, 48, 72)
```

```python
import sys
from build import *
from asmgen import Asm
from k_g2 import gen_g2
from k_g1b import gen_g1
def g2w(**kw0):
    def f(a, name, **kw):
        d, lds = gen_g2(a, name=name, **kw0); return d
    return f
def full(path, stamp=False, ln={}, g1={}, g2={}):
    lds2 = gen_g2(Asm(), **g2)[1]
    make([("ln_kernel", gen_ln, dict(stamp=stamp, **ln), 256, 256, 256),
          ("g1_kernel", gen_g1, dict(stamp=stamp, **g1), 256, 256, 102400),
          ("g2_kernel", g2w(stamp=stamp, **g2), {}, 256, 256, lds2)], path)
```

```python
from mk import *
g2n = dict(split=True, nbuf=6, pf=False)
wt = dict(stflags="sc0 sc1")
full("st_a.s", stamp=True, g2=g2n, ln=dict(pf=1, cpf=False), g1=dict(overlap=False, **wt))
full("st_b.s", stamp=True, g2=g2n, ln=dict(pf=1), g1=dict(overlap=False, **wt))
full("st_c.s", stamp=True, g2=g2n, ln=dict(pf=1), g1=dict(nopk=True, **wt))
full("st_d.s", stamp=True, g2=g2n, ln=dict(pf=1), g1=dict(nopk=True, strict=True, **wt))
full("st_e.s", stamp=True, g2=g2n, ln=dict(pf=1), g1=dict(**wt))
full("../cdna_kernels/x_a.s", g2=g2n, ln=dict(pf=1, cpf=False), g1=dict(overlap=False, **wt))
full("../cdna_kernels/x_b.s", g2=g2n, ln=dict(pf=1), g1=dict(overlap=False, **wt))
```

```python
from asmgen import *

WS_XN = 0
WS_HO = 4 << 20
HO_KS = 196608
HO_BYTES = 144 * HO_KS
WS_DBG = 64 << 20

def xred(a, v, t, op="v_add_f32"):
    a(f"s_nop 1")
    a(f"{op}_dpp {v}, {v}, {v} row_ror:8 row_mask:0xf bank_mask:0xf")
    a(f"v_mov_b32 {t}, {v}")
    a(f"s_nop 1")
    a(f"v_permlane16_swap_b32 {v}, {t}")
    a(f"{op} {v}, {v}, {t}")
    a(f"v_mov_b32 {t}, {v}")
    a(f"s_nop 1")
    a(f"v_permlane32_swap_b32 {v}, {t}")
    a(f"{op} {v}, {v}, {t}")

def gen_ln(a, name="ln_kernel", stamp=False, pf=0, cpf=True, xmap=0, pnt='', xnt=''):
    kernel_header(a, name)
    a(f"""
    s_cmp_ge_u32 s2, 256
    s_cbranch_scc1 {name}_done
    {"s_memrealtime s[20:21]" if stamp else ""}
    s_load_dwordx2 s[4:5], s[0:1], 0
    s_load_dwordx2 s[6:7], s[0:1], 72
    v_and_b32 v1, 7, v0                 ; j
    v_bfe_u32 v2, v0, 3, 3              ; p
    v_lshrrev_b32 v3, 6, v0             ; w
    v_lshlrev_b32 v4, 11, v1            ; j*2048
    v_lshl_add_u32 v4, v3, 9, v4        ; + w*512
    v_lshl_add_u32 v4, v2, 4, v4        ; + p*16
    s_lshl_b32 s3, s2, 14               ; wg*16384
    s_waitcnt lgkmcnt(0)
    s_mov_b32 s8, s4
    s_mov_b32 s9, s5
    s_mov_b32 s10, 0x400000
    s_mov_b32 s11, 0x20000
    buffer_load_dwordx4 v[8:11], v4, s[8:11], s3 offen {xnt}
    buffer_load_dwordx4 v[12:15], v4, s[8:11], s3 offen offset:128 {xnt}
    buffer_load_dwordx4 v[16:19], v4, s[8:11], s3 offen offset:256 {xnt}
    buffer_load_dwordx4 v[20:23], v4, s[8:11], s3 offen offset:384 {xnt}
    s_mov_b32 s12, s6
    s_mov_b32 s13, s7
    s_mov_b32 s14, 0x400000
    s_mov_b32 s15, 0x20000
    v_lshrrev_b32 v5, 2, v2
    v_lshl_add_u32 v5, v3, 3, v5
    v_lshlrev_b32 v5, 17, v5
    v_and_b32 v6, 3, v2
    v_lshl_add_u32 v5, v6, 8, v5
    v_lshl_add_u32 v5, v1, 4, v5
    s_lshr_b32 s16, s2, 1
    s_lshl_b32 s16, s16, 10
    s_and_b32 s17, s2, 1
    s_lshl_b32 s17, s17, 7
    s_add_u32 s16, s16, s17
    s_add_u32 s17, s16, 0x40000
    s_add_u32 s18, s16, 0x80000
    s_add_u32 s19, s16, 0xc0000
    s_add_u32 s44, s6, {52 << 20}
    s_addc_u32 s45, s7, 0
    s_mov_b32 s46, 65536
    s_mov_b32 s47, 0x20000
    s_lshl_b32 s3, s2, 8
    v_lshlrev_b32 v6, 6, v3
    v_mov_b32 v7, 0
    buffer_store_dword v7, v6, s[44:47], s3 offen
    v_lshlrev_b32 v6, 4, v1             ; j*16 (read)
    v_lshl_add_u32 v7, v3, 2, v6        ; j*16 + w*4 (write)
    """)
    if pf:
        a(f"""
        s_load_dwordx2 s[28:29], s[0:1], 8
        s_load_dwordx4 s[32:35], s[0:1], 32
        v_readfirstlane_b32 s26, v3
        {"s_and_b32 s27, s2, 7" if xmap == 0 else "s_and_b32 s27, s2, 1; NL s_lshl_b32 s27, s27, 2; NL s_bfe_u32 s36, s2, 0x20001; NL s_add_u32 s27, s27, s36".replace("; NL ", chr(10))}
        s_lshr_b32 s36, s2, 3               ; idx
        v_min_u32 v70, 6, v1                ; gate/up: line index (lane&7) clamped to 6
        v_lshlrev_b32 v70, 7, v70
        v_mul_u32_u24 v71, 7168, v2
        v_add_u32 v70, v70, v71             ; row (lane>>3)*7168 + line*128
        v_min_u32 v68, 5, v1
        v_lshrrev_b32 v69, 1, v68
        v_lshlrev_b32 v69, 11, v69          ; part*2048
        v_and_b32 v68, 1, v68
        v_lshl_add_u32 v69, v68, 7, v69
        v_mul_u32_u24 v71, 6144, v2
        v_add_u32 v69, v69, v71
        s_cmp_eq_u32 s26, 0
        s_cselect_b64 vcc, -1, 0
        s_cselect_b32 s37, 6144, 7168
        s_cselect_b32 s38, 256, 896
        v_cndmask_b32 v70, v70, v69, vcc
        s_mul_i32 s38, s38, s27             ; column bytes
        s_lshl_b32 s39, s36, 3
        s_mul_i32 s39, s39, s37
        s_add_u32 s38, s38, s39
        s_lshl_b32 s42, s37, 10             ; size
        s_lshl_b32 s37, s37, 8              ; 256 rows
        s_lshl_b32 s39, s36, 13
        v_and_b32 v69, 63, v0
        v_lshlrev_b32 v69, 7, v69
        s_getpc_b64 s[30:31]
{name}_pc:
        s_cmp_eq_u32 s26, 3
        s_cselect_b64 vcc, -1, 0
        s_cselect_b32 s42, {"code_end - " + name + "_pc" if cpf else "0"}, s42
        s_cselect_b32 s38, s39, s38
        s_cselect_b32 s37, 0x100000, s37
        v_cndmask_b32 v70, v70, v69, vcc
        s_mov_b32 s43, 0x20000
        s_waitcnt lgkmcnt(0)
        s_cmp_eq_u32 s26, 0
        s_cselect_b32 s40, s28, s32
        s_cselect_b32 s41, s29, s33
        s_cmp_eq_u32 s26, 2
        s_cselect_b32 s40, s34, s40
        s_cselect_b32 s41, s35, s41
        s_cmp_eq_u32 s26, 3
        s_cselect_b32 s40, s30, s40
        s_cselect_b32 s41, s31, s41
        """.replace("s_cselect_b32 s37, 6144, 7168", "s_movk_i32 s37, 7168\ns_cselect_b32 s37, 6144, s37").replace("s_cselect_b32 s38, 256, 896", "s_movk_i32 s38, 896\ns_cselect_b32 s38, 256, s38"))
        for i in range(pf):
            a(f"buffer_load_dword v71, v70, s[40:43], s38 offen {pnt}")
            a("s_add_u32 s38, s38, s37")
    for i in range(4):
        a(f"s_waitcnt vmcnt({3-i+pf+1})")
        if i == 0 and stamp: a("s_memrealtime s[22:23]")
        for r in range(4):
            src = 8 + 4 * i + r
            d = 24 + 2 * (4 * i + r)
            a(f"v_lshlrev_b32 v{d}, 16, v{src}")
            a(f"v_and_b32 v{d+1}, 0xffff0000, v{src}")
    a("v_pk_add_f32 v[56:57], v[24:25], v[26:27]")
    a("v_pk_add_f32 v[58:59], v[28:29], v[30:31]")
    for i in range(4, 16, 2):
        a(f"v_pk_add_f32 v[56:57], v[56:57], v[{24+2*i}:{25+2*i}]")
        a(f"v_pk_add_f32 v[58:59], v[58:59], v[{26+2*i}:{27+2*i}]")
    a("v_pk_add_f32 v[56:57], v[56:57], v[58:59]")
    a("v_add_f32 v56, v56, v57")
    xred(a, "v56", "v57")
    a("""
    ds_write_b32 v7, v56
    s_waitcnt lgkmcnt(0)
    s_barrier
    ds_read_b128 v[60:63], v6
    s_waitcnt lgkmcnt(0)
    v_add_f32 v60, v60, v61
    v_add_f32 v62, v62, v63
    v_add_f32 v60, v60, v62
    v_mul_f32 v60, 0x3a800000, v60
    v_mov_b32 v61, v60
    """)
    a("v_pk_add_f32 v[56:57], v[24:25], v[60:61] neg_lo:[0,1] neg_hi:[0,1]")
    a("v_pk_mul_f32 v[58:59], v[56:57], v[56:57]")
    a("v_pk_add_f32 v[56:57], v[26:27], v[60:61] neg_lo:[0,1] neg_hi:[0,1]")
    a("v_pk_mul_f32 v[62:63], v[56:57], v[56:57]")
    for i in range(2, 16):
        acc = "v[58:59]" if i % 2 == 0 else "v[62:63]"
        t = "v[56:57]" if i % 2 == 0 else "v[64:65]"
        a(f"v_pk_add_f32 {t}, v[{24+2*i}:{25+2*i}], v[60:61] neg_lo:[0,1] neg_hi:[0,1]")
        a(f"v_pk_fma_f32 {acc}, {t}, {t}, {acc}")
    a("v_pk_add_f32 v[58:59], v[58:59], v[62:63]")
    a("v_add_f32 v58, v58, v59")
    xred(a, "v58", "v59")
    a("""
    ds_write_b32 v7, v58 offset:128
    s_waitcnt lgkmcnt(0)
    s_barrier
    ds_read_b128 v[64:67], v6 offset:128
    v_cvt_pk_bf16_f32 v60, v60, v60
    v_lshlrev_b32 v60, 16, v60
    v_mov_b32 v61, v60
    s_waitcnt lgkmcnt(0)
    v_add_f32 v64, v64, v65
    v_add_f32 v66, v66, v67
    v_add_f32 v64, v64, v66
    v_mul_f32 v64, 0x3a800000, v64      ; var
    v_cvt_pk_bf16_f32 v64, v64, v64
    v_lshlrev_b32 v64, 16, v64
    v_add_f32 v64, 0x3727c5ac, v64      ; + 1e-5
    v_cvt_pk_bf16_f32 v64, v64, v64
    v_lshlrev_b32 v64, 16, v64
    v_sqrt_f32 v64, v64
    s_nop 0
    v_cvt_pk_bf16_f32 v64, v64, v64
    v_lshlrev_b32 v64, 16, v64
    v_rcp_f32 v64, v64
    s_nop 0
    v_mov_b32 v65, v64
    """)
    for i in range(4):
        for r in range(4):
            q = 4 * i + r
            d = 24 + 2 * q
            a(f"v_pk_add_f32 v[{d}:{d+1}], v[{d}:{d+1}], v[60:61] neg_lo:[0,1] neg_hi:[0,1]")
            a(f"v_cvt_pk_bf16_f32 v{8+q}, v{d}, v{d+1}")
            a(f"v_lshlrev_b32 v{d}, 16, v{8+q}")
            a(f"v_and_b32 v{d+1}, 0xffff0000, v{8+q}")
            a(f"v_pk_mul_f32 v[{d}:{d+1}], v[{d}:{d+1}], v[64:65]")
            a(f"v_cvt_pk_bf16_f32 v{8+q}, v{d}, v{d+1}")
        a(f"buffer_store_dwordx4 v[{8+4*i}:{11+4*i}], v5, s[12:15], s{16+i} offen")
    if stamp:
        a(f"""
        s_memrealtime s[24:25]
        s_waitcnt vmcnt(0)
        s_memrealtime s[26:27]
        s_waitcnt lgkmcnt(0)
        s_add_u32 s8, s6, {WS_DBG + 0x20000}
        s_addc_u32 s9, s7, 0
        s_mov_b32 s10, 0x100000
        s_lshl_b32 s3, s2, 4
        v_mov_b32 v1, 0
        v_mov_b32 v8, s20
        v_mov_b32 v9, s22
        v_mov_b32 v10, s24
        v_mov_b32 v11, s26
        buffer_store_dwordx4 v[8:11], v1, s[8:11], s3 offen
        """)
    a.label(f"{name}_done")
    a("s_endpgm")
    return kernel_desc(name, 72, 48, 72)
```

```python
from asmgen import *
from sched import *
from lay import *

STAGE = 20480
NBUF = 8
PB = 2 * STAGE
LDS_LN = NBUF * STAGE - 256
A_QKV = 0; A_X = 96; A_W = 160; A_CP = 200; A_E = 208; A_DUM = 210; A_R = 224
V_GU = 32
SPIN = 0x80000

def acc_reg(t, b):
    if t < 6: return ar(A_QKV + (t * 4 + b) * 4, 4)
    return vr(V_GU + ((t - 6) * 4 + b) * 4, 4)
def gu_base(t, b): return V_GU + ((t - 6) * 4 + b) * 4
def x_reg(s, b): return ar(A_X + ((s % 4) * 4 + b) * 4, 4)
def blk_read(t):
    if t < 6:
        r = (t >> 1) * 2; return (t & 1, r * 1024, (r + 1) * 1024)
    base, u = (6144, t - 6) if t < 13 else (13312, t - 13)
    return (2, base + u * 32, base + u * 32 + 3584)
def L(s): return [l.split(";")[0].strip() for l in s.strip().split("\n") if l.split(";")[0].strip()]

def xred(v, t, op="v_add_f32"):
    return L(f"""
    s_nop 1
    {op}_dpp {v}, {v}, {v} row_ror:8 row_mask:0xf bank_mask:0xf
    v_mov_b32 {t}, {v}
    s_nop 1
    v_permlane16_swap_b32 {v}, {t}
    {op} {v}, {v}, {t}
    v_mov_b32 {t}, {v}
    s_nop 1
    v_permlane32_swap_b32 {v}, {t}
    {op} {v}, {v}, {t}""")

def xred8(v, t):
    return L(f"""
    s_nop 1
    v_add_f32_dpp {v}, {v}, {v} quad_perm:[1,0,3,2] row_mask:0xf bank_mask:0xf
    s_nop 1
    v_add_f32_dpp {v}, {v}, {v} quad_perm:[2,3,0,1] row_mask:0xf bank_mask:0xf
    s_nop 1
    v_add_f32_dpp {v}, {v}, {v} row_half_mirror row_mask:0xf bank_mask:0xf""")

PAR, SC, V0M = 16, 18, 22

def gen_m(a, name, stamp=False, mimic=True, pfd=6, ppos=38, ramp=1.4, pro_w=3, pro_x=2,
          nb2=10, npre=7, hpost="s", sf=10, sp=15, sc=18, vper=4, dst=1.0, vskip=6, bpro_x=4, wspread=6, wpos=(16, 18, 20, 22, 24), xpos=(7, 9, 11, 13), istamp=False, nop=False, nop2=False, w2tail=False, prepos='post', pre31=0, sdens=(2, 3, 3), tb=(30, 2), estamp=False, hp=(-1, 4, 11), light=True, sing='last', LB=6, wgran=4, wlead=None, probe=None, warmh=True, w2mix=False, lsteps=45, hsleep=True, w1duty=False, stag=4, xrpos=((1, 17), (2, 16), (3, 8), (3, 17)), wbpos=((1, 18), (3, 12), (3, 15)), nin=7, lead_end=5, fmimic=False, pstep=1, womode='loop', abl=(), xp=(1, 2), wp=(18, 2), bchain=True, exoff=0, pollf='sc0 sc1', dfl='sc0 sc1', bstamp=False, XR=8, slead=None, vmimic=False, rs_early=True, cpf2=True, vpk=False, l2pf=(), pack=True, tpat=(0, 0, 1, 3), sgap=1, slmap=0x37261504, w2even=True, rs_late=True, xrpro=False, pnt0=False, p0f='', lxf='', wbf='', hoist=True, lmimic=True, b2late=False, hfp=78, fstamp=False, warm=None, hrep=4, orep=2, bper=2, early_w=0, ew_gap=12, rdirect='post', usewb=True, wst=12, ofull='sc0 sc1', lnco=False, p0pos='early', twop=True, bpre=False, hsl=0, ilv=0, hpf='sc0 sc1', pst=False, pollfirst=False, w0late=False, searly=False, fast=False, lp=(2, 10), rxpos='setup', stpos='w0', olds=True, rlds=False, efl='sc0 sc1', esp=2):
    if pnt0: lsteps = 50
    if womode != 'loop': lsteps = 36
    if fast: searly = True; pro_w = 2; pro_x = 2; warm = "poll" if warm else None
    PS = 2; PE = 28
    RING, LA = 5, 4
    B = 32
    pk_ = [0]
    names = []
    def PST(tag):
        if not stamp: return []
        k = pk_[0]; pk_[0] += 1; names.append(tag)
        return ["s_memrealtime s[98:99]", "s_memtime s[100:101]", "s_waitcnt lgkmcnt(0)",
                f"v_writelane_b32 v29, s98, {2*k}", f"v_writelane_b32 v29, s100, {2*k+1}"]
    kernel_header(a, name)
    a(f"""
    s_cmp_ge_u32 s2, 256
    s_cbranch_scc1 {name}_done
    """)
    if stamp:
        a("v_mov_b32 v29, 0")
        for l in PST("start"): a(l)
    a(f"""
    s_load_dwordx2 s[92:93], s[0:1], 0      ; x
    s_load_dwordx2 s[8:9], s[0:1], 72       ; ws
    s_load_dwordx2 s[70:71], s[0:1], 8      ; wqkv
    s_load_dwordx2 s[56:57], s[0:1], 16     ; wo
    s_load_dwordx4 s[64:67], s[0:1], 32
    s_load_dwordx2 s[60:61], s[0:1], 48     ; down
    s_load_dwordx2 s[52:53], s[0:1], 56     ; out
    s_getpc_b64 s[12:13]
{name}_pc0:
    s_mov_b32 s14, {'code_end' if warm else name + '_pc'} - {name}_pc0
    s_mov_b32 s15, 0x20000
    v_lshrrev_b32 v2, {4 if warm else 5}, v0
    v_lshlrev_b32 v2, 7, v2
    s_lshr_b32 s7, s2, 3
    s_lshl_b32 s7, s7, {11 if warm else 10}
    v_lshrrev_b32 v15, 6, v0
    v_and_b32 v1, 63, v0
    buffer_load_dword a{A_DUM}, v2, s[12:15], s7 offen
    v_readfirstlane_b32 s3, v15
    s_and_b32 s77, s2, 7
    {"s_lshl_b32 s77, s77, 2; NL s_lshr_b32 s77, SLM, s77; NL s_and_b32 s77, s77, 7".replace("; NL ", chr(10)).replace("SLM", hex(slmap)) if slmap else ""}
    s_lshl_b32 s5, s77, 2
    s_bfe_u32 s4, s2, 0x20003
    s_add_u32 s5, s5, s4                ; j
    s_lshr_b32 s4, s2, 5                ; m
    s_lshl_b32 s79, s4, 5
    s_add_u32 s79, s79, s5
    s_lshl_b32 s78, s79, 2
    s_add_u32 s78, s78, s3              ; gid
    v_and_b32 v24, 7, v1                ; jj
    v_lshrrev_b32 v25, 3, v1            ; p
    v_lshlrev_b32 v{B+4}, 11, v{25 if lnco else 24}
    v_lshl_add_u32 v{B+4}, v15, 9, v{B+4}
    v_lshl_add_u32 v{B+4}, v{24 if lnco else 25}, 4, v{B+4}
    s_lshl_b32 s7, s79, 14
    s_mov_b32 s94, 0x400000
    s_mov_b32 s95, 0x20000
    s_mov_b32 s10, {WS_XR + XN_BYTES}
    s_mov_b32 s11, 0x20000
    s_mov_b32 s82, {FL_BYTES}
    s_mov_b32 s83, 0x20000
    v_mov_b32 v23, 0
    s_mov_b32 s90, {FL_EP}
    s_lshl_b32 s91, s78, 7
    s_add_u32 s91, s91, {FL_HALOF}
    s_waitcnt lgkmcnt(0)
    """)
    tr = Trace()
    pro = []
    for i in range(4):
        pro.append(VM(f"buffer_load_dwordx4 v[{B+8+4*i}:{B+11+4*i}], v{B+4}, s[92:95], s7 offen offset:{128*i} {lxf}", ("LX", i)))
    pro += L(f"""
    s_add_u32 s80, s8, {WS_FL}
    s_addc_u32 s81, s9, 0
    s_mov_b64 s[54:55], s[92:93]
    """)
    pro.append(VM(f"buffer_load_dword v22, v23, s[80:83], s90 offen", ("EP", 0)))
    pro.append(VM(f"buffer_load_dword a{A_DUM}, v23, s[80:83], s91 offen sc0 sc1", ("EP", 1)))
    pro += L(f"""
    s_lshr_b32 s7, s2, 3
    v_min_u32 v26, 6, v24
    v_lshlrev_b32 v26, 7, v26
    v_min_u32 v28, 5, v24
    v_lshrrev_b32 v27, 1, v28
    v_lshlrev_b32 v27, 11, v27
    v_and_b32 v28, 1, v28
    v_lshl_add_u32 v27, v28, 7, v27
    s_cmp_eq_u32 s3, 0
    s_cselect_b64 vcc, -1, 0
    s_movk_i32 s88, 7168
    s_cselect_b32 s88, 6144, s88
    s_movk_i32 s89, 896
    s_cselect_b32 s89, 256, s89
    s_cselect_b64 s[84:85], s[70:71], s[64:65]
    v_cndmask_b32 v8, v26, v27, vcc
    s_cmp_eq_u32 s3, 2
    s_cselect_b64 s[84:85], s[66:67], s[84:85]
    s_mul_i32 s89, s89, s77
    s_lshl_b32 s86, s88, 10
    s_mov_b32 s87, 0x20000
    v_mul_lo_u32 v26, v25, s88
    v_add_u32 v26, v26, v8
    s_lshl_b32 s91, s7, 3
    s_mul_i32 s91, s91, s88
    s_add_u32 s91, s91, s89
    s_cmp_eq_u32 s3, 3
    s_cselect_b32 s86, 0, s86
    s_lshl_b32 s97, s4, 2
    s_add_u32 s97, s97, s3
    s_lshl_b32 s97, s97, 3
    s_add_u32 s97, s97, s77
    s_lshl_b32 s97, s97, 7
    s_add_u32 s97, s97, {FL_LN}
    """)
    pro.append(VM(f"buffer_load_dword a{A_DUM}, v23, s[80:83], s97 offen sc0 sc1", ("P", -3)))
    P0 = [VM(f"buffer_load_dword a{A_DUM}, v28, s[84:87], s91 offen {p0f}", ("P", -1))]
    pro.append("v_mov_b32 v28, v26")
    if p0pos == "early": pro += P0
    pro += L(f"""
    s_mov_b32 s62, {3584*2048}
    s_mov_b32 s63, 0x20000
    """)
    DM = sum(1 << j for j in (0, 3, 4, 5, 8, 9, 12, 13, 16, 19, 20, 21, 26, 27, 28, 31))
    DUTY = f"""s_bfm_b32 s91, s5, 0
    s_and_b32 s91, s91, {DM:#x}
    s_bcnt1_i32_b32 s91, s91
    s_and_b32 s91, s91, 1
    s_lshl_b32 s72, s4, 1
    s_add_u32 s91, s91, s72
    s_lshl_b32 s91, s91, 1
    s_bitcmp1_b32 {DM:#x}, s5
    s_cselect_b32 s86, s86, 0
    v_bfe_u32 v26, v1, 3, 1
    v_mul_lo_u32 v26, v26, s88
    v_add_u32 v8, v8, v26""" if w1duty else "s_mov_b32 s91, s7"
    DUTY = """s_lshr_b32 s91, s4, 1
    s_lshl_b32 s91, s91, 2
    s_and_b32 s72, s5, 3
    s_add_u32 s91, s91, s72
    s_lshl_b32 s91, s91, 2
    v_bfe_u32 v26, v1, 3, 2
    v_mul_lo_u32 v26, v26, s88
    v_add_u32 v8, v8, v26
    s_and_b32 s68, s4, 1
    s_lshl_b32 s68, 1, s68"""
    LB_ = lsteps * 128 // (2 if w2mix else 1)
    LM = sum(1 << j for j in (0, 3, 4, 8, 12, 16, 19, 27, 28, 31))
    LIGHT = f"""s_bfm_b32 s91, s5, 0
    s_and_b32 s91, s91, {LM:#x}
    s_bcnt1_i32_b32 s91, s91
    s_mul_i32 s72, s4, 10
    s_add_u32 s91, s91, s72
    s_mul_i32 s91, s91, {LB_}
    s_add_u32 s91, s91, {768*2048 if w2mix else 0}
    s_bitcmp1_b32 {LM:#x}, s5
    s_cselect_b32 s72, s62, 0
    v_and_b32 v26, {LB_//128 - 1}, v1
    v_lshlrev_b32 v26, 7, v26
    v_lshrrev_b32 v27, 5, v1
    v_mul_u32_u24 v27, {1792*2048 if w2mix else 0}, v27
    v_add_u32 v26, v26, v27""" if light else "s_lshl_b32 s91, s2, 11\ns_mov_b32 s72, s62"
    if stag:
        LIGHT = ("""s_lshr_b32 s91, s2, 1
    s_and_b32 s73, s2, 1
    s_sub_u32 s73, s73, 1
    s_and_b32 s73, s73, 3""" if w2even else """s_lshr_b32 s91, s4, 1
    s_lshl_b32 s91, s91, 5
    s_add_u32 s91, s91, s5
    s_mov_b32 s73, s68""") + f"""
    s_mul_i32 s91, s91, {lsteps * 128}
    s_mov_b32 s72, s62
    v_min_u32 v26, {lsteps - 1}, v1
    v_lshlrev_b32 v26, 7, v26"""
    SETUP = L(f"""
    {DUTY}
    s_add_u32 s91, s91, 256
    s_mul_i32 s91, s91, s88
    s_add_u32 s89, s89, s91
    s_lshl_b32 s88, s88, 6
    v_and_b32 v31, 15, v1
    v_lshlrev_b32 v31, 7, v31
    {LIGHT}
    s_cmp_eq_u32 s3, 3
    s_cselect_b64 vcc, -1, 0
    s_cselect_b32 s89, s91, s89
    s_cselect_b32 s86, {0 if w2tail else 's72'}, s86
    s_cselect_b32 s88, {128 * lsteps * 128}, s88
    s_cselect_b64 s[84:85], s[60:61], s[84:85]
    v_cndmask_b32 v8, v8, v{26 if light else 31}, vcc
    s_mov_b32 s69, s86
    s_mov_b32 s0, s89
    s_cselect_b32 s1, 2, -1
    s_cselect_b32 s68, s73, s68
    v_lshlrev_b32 v15, 7, v1
    s_lshl_b32 s6, s4, 4
    s_lshl_b32 s72, s3, 2
    s_add_u32 s6, s6, s72               ; tb0
    s_mul_i32 s46, s3, 5120
    v_lshrrev_b32 v16, 4, v1
    v_bfe_u32 v17, v1, 2, 2
    v_lshl_add_u32 v20, v16, 3, v17
    v_and_b32 v18, 1, v16
    v_lshlrev_b32 v21, 1, v18
    v_and_b32 v19, 3, v1
    v_xor_b32 v21, v21, v19
    v_lshlrev_b32 v21, 4, v21
    v_mul_u32_u24 v20, 6144, v20
    v_add_u32 v20, v20, v21
    v_lshlrev_b32 v9, 8, v16
    v_lshl_add_u32 v9, v17, 6, v9
    v_lshl_add_u32 v9, v19, 3, v9
    v_lshl_add_u32 v9, v18, 5, v9
    v_xor_b32 v10, 32, v9
    v_lshrrev_b32 v11, 2, v1
    v_mul_u32_u24 v11, 224, v11
    v_lshl_add_u32 v11, v19, 3, v11
    v_mov_b32 v12, v9
    v_mov_b32 v13, v10
    v_mov_b32 v14, v11
    s_mul_i32 s73, s6, {PSTR//2}
    v_lshl_add_u32 v7, v1, 4, s73
    v_cmp_le_u32 vcc, 16, v1
    v_add_u32 v30, {ODD}, v7
    v_add_u32 v28, {ODD+SKIP}, v7
    v_cndmask_b32 v30, v30, v28, vcc
    v_cmp_le_u32 vcc, 24, v1
    v_add_u32 v28, {SKIP}, v7
    s_lshl_b32 s72, s5, 6
    v_cndmask_b32 v7, v7, v28, vcc
    s_and_b32 s73, s5, 1
    s_mul_i32 s74, s5, 7
    s_add_u32 s75, s74, s73
    s_xor_b32 s76, s73, 1
    s_mul_i32 s76, s76, 6
    s_add_u32 s76, s76, s74
    s_lshl_b32 s73, s73, 1
    s_mul_i32 s74, s5, 224
    s_mov_b32 s42, 0
    s_add_u32 s48, s8, {WS_HO}
    s_addc_u32 s49, s9, 0
    s_mov_b32 s50, {HO_BYTES}
    s_mov_b32 s51, 0x20000
    s_add_u32 s47, s46, {NBUF * STAGE}
    s_mov_b32 s43, 0
    """)
    for w in range(1, 4): SETUP += [f"s_cmp_eq_u32 s3, {w}", f"s_cbranch_scc1 {name}_setup{w}"]
    for w in range(4):
        SETUP.append(f"{name}_setup{w}:")
        for i in range(5):
            r = 5 * w + i
            srd = 12 + 4 * i
            if r < 6:
                ptr, stride = 70, 6144
                SETUP += [f"s_add_u32 s{32+i}, s72, {(r >> 1) * 2048 + (r & 1) * 4 * stride}", f"v_mov_b32 v{2+i}, v20"]
            else:
                ptr, stride = (64 if r < 13 else 66), 7168
                rr = r - (6 if r < 13 else 13)
                SETUP += L(f"""
                s_mov_b32 s{32+i}, s74
                v_add_u32 v26, {64*rr}, v1
                v_mul_u32_u24 v27, 4682, v26
                v_lshrrev_b32 v27, 16, v27
                v_mul_u32_u24 v28, 14, v27
                v_sub_u32 v26, v26, v28
                v_add_u32 v26, s73, v26
                v_subrev_u32 v28, 14, v26
                v_min_u32 v26, v26, v28
                v_bfe_u32 v28, v27, 2, 2
                v_lshlrev_b32 v28, 3, v28
                v_lshrrev_b32 v21, 4, v27
                v_lshl_add_u32 v28, v21, 2, v28
                v_and_b32 v27, 3, v27
                v_add_u32 v28, v28, v27
                v_mul_u32_u24 v28, 7168, v28
                v_lshl_add_u32 v{2+i}, v26, 4, v28
                """)
            SETUP += [f"s_mov_b64 s[{srd}:{srd+1}], s[{ptr}:{ptr+1}]", f"s_mov_b32 s{srd+2}, {1024 * stride}",
                      f"s_mov_b32 s{srd+3}, 0x20000", f"s_mov_b32 s{37+i}, {32 * stride}"]
        if w < 3: SETUP.append(f"s_branch {name}_setup_done")
    SETUP.append(f"{name}_setup_done:")
    RAW, UNP, STV = 144, 176, 240
    if fast:
        SETUP += L(f"""
        s_mov_b64 s[64:65], s[54:55]
        s_mov_b32 s66, 0x400000
        s_mov_b32 s67, 0x20000
        s_lshl_b32 s70, s6, 15
        s_lshl_b32 s71, s77, 14
        s_lshl_b32 s72, s6, 7
        s_add_u32 s71, s71, s72
        s_add_u32 s71, s71, {FL_ST}
        s_lshl_b32 s72, s79, 6
        s_add_u32 s72, s72, {FL_ST}
        s_cmp_eq_u32 s3, 0
        s_cselect_b32 s72, s72, {FL_BYTES}
        v_and_b32 v17, 15, v1
        v_lshlrev_b32 v18, 7, v19
        v_lshlrev_b32 v16, 4, v16
        v_lshl_add_u32 v16, v17, 11, v16
        v_lshlrev_b32 v17, 3, v17
        """) + [VM(f"buffer_load_dword a{A_DUM}, v18, s[80:83], s71 offen sc0 sc1", ("P", -4))] + L(f"""
        v_lshlrev_b32 v18, 14, v25
        v_lshl_add_u32 v18, v24, 3, v18
        v_lshlrev_b32 v19, 2, v24
        """)
    pro += L(f"""
    v_lshrrev_b32 v26, 2, v25
    s_lshl_b32 s92, s3, 3
    v_add_u32 v26, s92, v26
    s_mov_b32 s92, {KS}
    v_mul_lo_u32 v{B+5}, v26, s92
    v_and_b32 v26, 3, v25
    s_and_b32 s92, s79, 1
    v_lshl_add_u32 v26, v26, 1, s92
    s_bfe_u32 s93, s79, 0x10001
    s_sub_u32 s94, {3 if PAD else 30}, s93
    v_cmp_le_u32 vcc, s94, v26
    v_lshl_add_u32 v{B+5}, v24, 4, v{B+5}
    s_mul_i32 s93, s93, {ODD}
    v_addc_co_u32 v26, vcc, 0, v26, vcc
    v_lshl_add_u32 v{B+5}, v26, 7, v{B+5}
    s_lshr_b32 s92, s79, 2
    s_mul_i32 s92, s92, {PSTR}
    s_add_u32 s92, s92, s93
    v_add_u32 v{B+5}, s92, v{B+5}
    s_mov_b32 s92, 0
    s_mov_b32 s93, {2*KS}
    s_mov_b32 s94, {4*KS}
    s_mov_b32 s95, {6*KS}
    v_lshlrev_b32 v{B+6}, 4, v{25 if lnco else 24}
    v_add_u32 v{B+6}, {LDS_LN}, v{B+6}

    s_lshl_b32 s96, s3, 2
    v_add_u32 v{B+7}, s96, v{B+6}
    """)
    def pk(i): return f"v[{B+i}:{B+i+1}]"
    if warm in ("x", "both"): pro.append("@WARM@")
    for i in range(4):
        if pst and i == 0: pro += PST("prex")
        pro.append(VW([("LX", i)]))
        if pst and i == 3: pro += PST("x3")
        if (p0pos == "mid" and i == 3) or (p0pos == "mid0" and i == 0): pro += P0
        for r in range(4):
            src = B + 8 + 4 * i + r; d = B + 24 + 2 * (4 * i + r)
            pro += [f"v_lshlrev_b32 v{d}, 16, v{src}", f"v_and_b32 v{d+1}, 0xffff0000, v{src}"]
        for r in range(4):
            q = 4 * i + r; acc = 56 + 2 * (q % 2)
            if q < 2: continue
            if q < 4: pro.append(f"v_pk_add_f32 {pk(acc)}, {pk(24 + 2*(q-2))}, {pk(24 + 2*q)}")
            else: pro.append(f"v_pk_add_f32 {pk(acc)}, {pk(acc)}, {pk(24 + 2*q)}")
    pro += [f"v_pk_add_f32 {pk(56)}, {pk(56)}, {pk(58)}", f"v_add_f32 v{B+56}, v{B+56}, v{B+57}"]
    xr_ = xred8 if lnco else xred
    pro += xr_(f"v{B+56}", f"v{B+57}")
    pro += [f"v_mul_f32 v{B+60}, 0x3b800000, v{B+56}", f"v_mov_b32 v{B+61}, v{B+60}"]
    NEG = "neg_lo:[0,1] neg_hi:[0,1]"
    for q in range(16):
        acc = 58 if q % 2 == 0 else 62; t = 64 if q % 2 == 0 else 66
        pro.append(f"v_pk_add_f32 {pk(t)}, {pk(24+2*q)}, {pk(60)} {NEG}")
        pro.append(f"v_pk_mul_f32 {pk(acc)}, {pk(t)}, {pk(t)}" if q < 2 else f"v_pk_fma_f32 {pk(acc)}, {pk(t)}, {pk(t)}, {pk(acc)}")
    pro += [f"v_pk_add_f32 {pk(58)}, {pk(58)}, {pk(62)}", f"v_add_f32 v{B+58}, v{B+58}, v{B+59}"]
    pro += xr_(f"v{B+58}", f"v{B+59}")
    pro += L(f"""
    ds_write_b32 v{B+7}, v{B+60}
    ds_write_b32 v{B+7}, v{B+58} offset:128
    s_waitcnt lgkmcnt(0)
    s_barrier
    ds_read_b128 v[{B+60}:{B+63}], v{B+6}
    ds_read_b128 v[{B+64}:{B+67}], v{B+6} offset:128
    s_waitcnt lgkmcnt(1)
    v_add_f32 v{B+56}, v{B+60}, v{B+61}
    v_add_f32 v{B+57}, v{B+62}, v{B+63}
    v_add_f32 v{B+56}, v{B+56}, v{B+57}
    v_mul_f32 v{B+56}, 0x3e800000, v{B+56}
    v_sub_f32 v{B+60}, v{B+60}, v{B+56}
    v_sub_f32 v{B+61}, v{B+61}, v{B+56}
    v_sub_f32 v{B+62}, v{B+62}, v{B+56}
    v_sub_f32 v{B+63}, v{B+63}, v{B+56}
    v_mul_f32 v{B+57}, v{B+60}, v{B+60}
    v_fmac_f32 v{B+57}, v{B+61}, v{B+61}
    v_fmac_f32 v{B+57}, v{B+62}, v{B+62}
    v_fmac_f32 v{B+57}, v{B+63}, v{B+63}
    v_cvt_pk_bf16_f32 v{B+60}, v{B+56}, v{B+56}
    v_lshlrev_b32 v{B+60}, 16, v{B+60}
    v_mov_b32 v{B+61}, v{B+60}
    s_waitcnt lgkmcnt(0)
    v_add_f32 v{B+64}, v{B+64}, v{B+65}
    v_add_f32 v{B+66}, v{B+66}, v{B+67}
    v_add_f32 v{B+64}, v{B+64}, v{B+66}
    v_mul_f32 v{B+64}, 0x3a800000, v{B+64}
    v_fmac_f32 v{B+64}, 0x3e800000, v{B+57}
    v_cvt_pk_bf16_f32 v{B+64}, v{B+64}, v{B+64}
    v_lshlrev_b32 v{B+64}, 16, v{B+64}
    v_add_f32 v{B+64}, 0x3727c5ac, v{B+64}
    v_cvt_pk_bf16_f32 v{B+64}, v{B+64}, v{B+64}
    v_lshlrev_b32 v{B+64}, 16, v{B+64}
    v_sqrt_f32 v{B+64}, v{B+64}
    v_pk_add_f32 {pk(24)}, {pk(24)}, {pk(60)} {NEG}
    v_cvt_pk_bf16_f32 v{B+64}, v{B+64}, v{B+64}
    @GRAN
    v_lshlrev_b32 v{B+64}, 16, v{B+64}
    v_rcp_f32 v{B+64}, v{B+64}
    v_pk_add_f32 {pk(26)}, {pk(26)}, {pk(60)} {NEG}
    v_mov_b32 v{B+65}, v{B+64}
    """)
    gi = pro.index("@GRAN")
    gran = []
    if fast:
        gran = [VW([("EP", 0)]), "v_add_u32 v22, 0x9e3779b9, v22", f"v_and_b32 v{B+68}, 0xffff, v{B+64}", f"v_or_b32 v{B+68}, v{B+68}, v{B+60}", f"v_mov_b32 v{B+69}, v22",
                VM(f"buffer_store_dwordx2 v[{B+68}:{B+69}], v18, s[80:83], s72 offen sc0 sc1", ("GS", 0))]
    pro[gi:gi + 1] = gran
    if fast:
        RXL = []
        for b in range(4):
            for k in range(2):
                r = RAW + (k * 4 + b) * 4
                RXL.append(VM(f"buffer_load_dwordx4 v[{r}:{r+3}], v16, s[64:67], s70 offen offset:{64*k}", ("RX", 0)))
            RXL.append("s_add_u32 s70, s70, 0x8000")
        if rxpos == "setup": SETUP += RXL
        else: pro += RXL
    for i in range(4):
        for r in range(4):
            q = 4 * i + r; d = B + 24 + 2 * q
            if q >= 2: pro.append(f"v_pk_add_f32 {pk(24+2*q)}, {pk(24+2*q)}, {pk(60)} {NEG}")
            if lmimic: pro += [f"v_cvt_pk_bf16_f32 v{B+72+q}, v{d}, v{d+1}", f"v_lshlrev_b32 v{d}, 16, v{B+72+q}", f"v_and_b32 v{d+1}, 0xffff0000, v{B+72+q}"]
            pro += [f"v_pk_mul_f32 {pk(24+2*q)}, {pk(24+2*q)}, {pk(64)}", f"v_cvt_pk_bf16_f32 v{B+72+q}, v{d}, v{d+1}"]
        if not lnco:
            pro.append(VM(f"buffer_store_dwordx4 v[{B+72+4*i}:{B+75+4*i}], v{B+5}, s[8:11], s{92+i} offen sc0 sc1", ("LS", i)))
            continue
        if i > 0:
            pro += ["s_waitcnt lgkmcnt(0)", VM(f"buffer_store_dwordx4 v[{B+84+4*i}:{B+87+4*i}], v{B+5}, s[8:11], s{91+i} offen sc0 sc1", ("LS", i - 1))]
        pro += [f"ds_write_b128 v{B+2}, v[{B+72+4*i}:{B+75+4*i}] offset:{1152*i}", f"ds_read_b128 v[{B+88+4*i}:{B+91+4*i}], v{B+3} offset:{1152*i}"]
        if i == 3:
            pro += ["s_waitcnt lgkmcnt(0)", VM(f"buffer_store_dwordx4 v[{B+100}:{B+103}], v{B+5}, s[8:11], s95 offen sc0 sc1", ("LS", 3))]

    def dma_ops(st, i, static):
        m0 = f"s_add_u32 m0, s46, {(st % NBUF) * STAGE + i * 1024}" if static else f"s_add_u32 m0, s44, {(st % 2) * STAGE + i * 1024}"
        return (m0, VM(f"buffer_load_dwordx4 v{2+i}, s[{12+4*i}:{15+4*i}], s{32+i} offen lds", ("W", st)),
                f"s_add_u32 s{32+i}, s{32+i}, s{37+i}")
    def x_ops(s, b):
        return (None, VM(f"buffer_load_dwordx4 {x_reg(s, b)}, v{30 if b & 1 else 7}, s[8:11], s42 offen offset:{(b>>1)*PSTR} sc1", ("X", s)),
                f"s_add_u32 s42, s42, {KS}" if b == 3 else None)
    def w_reg(t, k): return A_W + (t % 4) * 8 + k * 4
    def trread(t, k, p):
        v, o0, o1 = blk_read(t)
        return f"ds_read_b64_tr_b16 {ar(w_reg(t, k) + 2 * p, 2)}, v{12 + v} offset:{(o1 if p else o0) + k * STAGE}"

    pro += PST("lncomp")
    if early_w:
        k0 = next(i for i, r in enumerate(pro) if isinstance(r, VW) and ("LX", 0) in r.tags)
        k3 = next(i for i, r in enumerate(pro) if isinstance(r, VW) and ("LX", 3) in r.tags)
        q = [dma_ops(st, i, True) for st in range(early_w) for i in range(5)]
        body = []; n_ = 0
        for r in pro[k3 + 1:]:
            body.append(r); n_ += 1
            if q and n_ % ew_gap == 0:
                if isinstance(r, str) and r.startswith("v_pk_"):
                    m0, d, adv = q.pop(0); body[-1:] = [m0, r, d, adv]
                else: n_ -= 1
        assert not q
        pro = pro[:k0] + SETUP + pro[k0:k3 + 1] + body
    else:
        if searly:
            k0 = next(i for i, r in enumerate(pro) if isinstance(r, VW) and ("LX", 0) in r.tags) - (5 if pst else 0)
            pro = pro[:k0] + SETUP + pro[k0:]
        else: pro += SETUP
        if pst: pro += PST("setup")
        for i in range(5 if not w0late else 0):
            m0, d, adv = dma_ops(0, i, True); pro += [m0, "s_nop 0", d, adv]
    STL = [f"buffer_load_dwordx2 v[{STV+2*b}:{STV+2*b+1}], v17, s[80:83], s71 offen offset:{128*b} sc1" for b in range(4)]
    if fast:
        W1 = []
        for i in range(5):
            m0, d, adv = dma_ops(1, i, True); W1 += [m0, "s_nop 0", d, adv]
        if stpos != "w0": pro += W1
        pro += L(f"""
        s_lshr_b32 s92, s79, 3
        s_lshl_b32 s92, s92, 10
        s_and_b32 s93, s79, 7
        s_lshl_b32 s93, s93, 2
        s_add_u32 s92, s92, s93
        s_add_u32 s92, s92, {FL_LN}
        s_cmp_eq_u32 s3, 0
        s_cselect_b32 s92, s92, {FL_BYTES}
        v_lshlrev_b32 v27, 7, v24
        s_mov_b32 s42, {2*KS}
        s_mov_b32 s45, 0
        """)
        if pst: pro += PST("w0")
        pro.append(VW([("RX", 0)]))
        for i in range(32): pro += [f"v_lshlrev_b32 v{UNP+2*i}, 16, v{RAW+i}", f"v_and_b32 v{UNP+2*i+1}, 0xffff0000, v{RAW+i}"]
        if pst: pro += PST("unp")
        pro.append(VW([("LS", i) for i in range(4)]))
        pro.append("s_barrier")
        pro.append(VM(f"buffer_store_dword v22, v27, s[80:83], s92 offen sc0 sc1", ("LF", 0)))
        if pst: pro += PST("bar")
        pro += [VM(x, ("ST", 0)) for x in STL]
        if stpos == "w0": pro += W1
        if warm: pro.append("@WARM@")
        pro.append(VW([("ST", 0)]))
        pro += L(f"""
        {name}_st_back:
        v_cmp_eq_u32 vcc, v{STV+1}, v22
        v_cmp_eq_u32 s[64:65], v{STV+3}, v22
        v_cmp_eq_u32 s[66:67], v{STV+5}, v22
        v_cmp_eq_u32 s[92:93], v{STV+7}, v22
        s_and_b64 vcc, vcc, s[64:65]
        s_and_b64 s[66:67], s[66:67], s[92:93]
        s_and_b64 vcc, vcc, s[66:67]
        s_cmp_eq_u64 vcc, exec
        s_cbranch_scc0 {name}_st_spin
        {name}_st_out:
        """)
        if pst: pro += PST("poll")
        for b in range(4): pro += [f"v_lshlrev_b32 v{STV+2*b+1}, 16, v{STV+2*b}", f"v_and_b32 v{STV+2*b}, 0xffff0000, v{STV+2*b}"]
        for b in range(4): pro += [f"v_rcp_f32 v{STV+2*b+1}, v{STV+2*b+1}"]
        for b in range(4):
            for k in range(2):
                f_ = k * 4 + b
                st_ = f"v[{STV+2*b}:{STV+2*b+1}]"
                U = [UNP + 2 * (4 * f_ + r) for r in range(4)]
                pro += [f"v_pk_add_f32 v[{u}:{u+1}], v[{u}:{u+1}], {st_} op_sel_hi:[1,0] neg_lo:[0,1] neg_hi:[0,1]" for u in U]
                pro += [f"v_cvt_pk_bf16_f32 v{u+1}, v{u}, v{u+1}" for u in U]
                for u in U: pro += [f"v_lshlrev_b32 v{u}, 16, v{u+1}", f"v_and_b32 v{u+1}, 0xffff0000, v{u+1}"]
                pro += [f"v_pk_mul_f32 v[{u}:{u+1}], v[{u}:{u+1}], {st_} op_sel:[0,1] op_sel_hi:[1,1]" for u in U]
                pro += [f"v_cvt_pk_bf16_f32 v{u}, v{u}, v{u+1}" for u in U]
                pro += [f"v_accvgpr_write_b32 a{A_X + (k * 4 + b) * 4 + r}, v{U[r]}" for r in range(4)]
        pro.append(VW([("W", 0), ("W", 1)]))
        if pst: pro += PST("norm")
    else:
        pro.append(VW([("EP", 0)]))
        pro += L(f"""
        v_add_u32 v22, 0x9e3779b9, v22
        s_lshr_b32 s92, s79, 3
        s_lshl_b32 s92, s92, 10
        s_and_b32 s93, s79, 7
        s_lshl_b32 s93, s93, 2
        s_add_u32 s92, s92, s93
        s_add_u32 s92, s92, {FL_LN}
        s_cmp_eq_u32 s3, 0
        s_cselect_b32 s92, s92, {FL_BYTES}
        v_lshlrev_b32 v27, 7, v24
        v_lshlrev_b32 v26, 2, v24
        """)
        if pst: pro += PST("w0")
        pro.append(VW([("LS", i) for i in range(4)]))
        if pst: pro += PST("ack")
        pro.append("s_barrier")
        if pst: pro += PST("bar")
        pro.append(VM(f"buffer_store_dword v22, v27, s[80:83], s92 offen sc0 sc1", ("LF", 0)))
        for st in range(0 if w0late else max(1, early_w), pro_w):
            for i in range(5):
                m0, d, adv = dma_ops(st, i, True); pro += [m0, "s_nop 0", d, adv]
        if xrpro:
            for i in range(4):
                pro += [f"s_mov_b32 s96, {WS_XR + 2*i*KS}", VM(f"buffer_store_dwordx4 v[{B+8+4*i}:{B+11+4*i}], v{B+5}, s[8:11], s96 offen sc0 sc1", ("Z", 3 + i))]
        elif rdirect is None: pro += [f"v_accvgpr_write_b32 a{A_R+i}, v{B+8+i}" for i in range(16)] + [f"v_mov_b32 v20, v{B+5}"]
        if pst: pro += PST("dma")
        if warm in ("poll", "both"): pro.append("@WARM@")
        pro += L(f"""
        s_mov_b32 s45, {SPIN}
        {name}_poll:
        buffer_load_dword v28, v26, s[80:83], s97 offen {pollf}
        s_waitcnt vmcnt(0)
        v_cmp_eq_u32 vcc, v28, v22
        s_cmp_eq_u64 vcc, exec
        s_cbranch_scc1 {name}_poll_done
        s_sub_u32 s45, s45, 1
        s_cmp_lg_u32 s45, 0
        s_cbranch_scc1 {name}_poll
        {name}_poll_done:
        """)
        if pst: pro += PST("poll")
        for s in range(pro_x):
            for b in range(4):
                _, d, adv = x_ops(s, b); pro += [d] + ([adv] if adv else [])
        if pst: pro += PST("xiss")
    pro += ["s_barrier"]
    for t in range(2): pro += [trread(t, k, p) for k in range(2) for p in range(2)]
    pro += L(f"""
    s_mov_b32 s58, 0x200000
    s_mov_b32 s59, 0x20000
    s_lshl_b32 s91, s78, 13
    v_lshlrev_b32 v27, 4, v24
    v_lshl_add_u32 v21, v25, 10, v27
    v_lshl_add_u32 v0, v25, 8, v27
    s_add_u32 s64, s8, {WS_WB}
    s_addc_u32 s65, s9, 0
    s_mov_b32 s66, {WB_BYTES}
    s_mov_b32 s67, 0x20000
    s_lshl_b32 s95, s78, 11
    s_add_u32 s93, s95, {WB_WO}
    v_lshlrev_b32 v26, 2, v1
    s_lshl_b32 s94, s78, 8
    s_lshl_b32 s92, s2, 2
    s_add_u32 s92, s92, {FL_G}
    s_cmp_eq_u32 s3, 0
    s_cselect_b32 s92, s92, {FL_BYTES}
    v_lshlrev_b32 v27, 10, v24
    """)
    aev = {}
    for i in range(4 if (not xrpro and rdirect is None) else 0):
        aev[xrpos[i]] = [f"s_mov_b32 s96, {WS_XR + 2*i*KS}", VM(f"buffer_store_dwordx4 a[{A_R+4*i}:{A_R+3+4*i}], v20, s[8:11], s96 offen sc0 sc1", ("Z", 3 + i))]
    aev[wbpos[0]] = [VM(f"buffer_load_dwordx4 a[{A_CP}:{A_CP+3}], v21, s[60:63], s91 offen offset:384 {wbf}", ("CA", 0)),
                   VM(f"buffer_load_dwordx4 a[{A_CP+4}:{A_CP+7}], v21, s[56:59], s91 offen offset:384 {wbf}", ("CB", 0))]
    if womode == "first": aev[(3, 1)] = ["s_lshl_b32 s0, s78, 11", VM(f"buffer_load_dword a{A_DUM}, v31, s[56:59], s0 offen", ("P", 98))]
    aev[(2, 10)] = [VM("buffer_store_dword v23, v26, s[80:83], s94 offen sc0 sc1", ("Z", 1))]
    aev[wbpos[1]] = [VW([("CA", 0), ("CB", 0)]), VM(f"buffer_store_dwordx4 a[{A_CP}:{A_CP+3}], v0, s[64:67], s93 offen sc0 sc1", ("Z", 0)), f"s_mov_b32 s66, {WB_WO}"]
    aev[wbpos[2]] = [VM(f"buffer_store_dwordx4 a[{A_CP+4}:{A_CP+7}], v0, s[64:67], s95 offen sc0 sc1", ("Z", 2))]
    if not usewb:
        for k_ in wbpos: aev.pop(k_)
    pro += PST("a_loop")
    if istamp: pro += ["s_mov_b32 s99, 0", "v_mov_b32 v29, 0"]
    if nop: pro += ["s_mov_b32 s86, 0"]
    if nop2: pro += ["s_cmp_eq_u32 s3, 3", "s_cselect_b32 s86, 0, s86"]
    tr.add("pro", pro)

    RB = 8
    NBF, NBS, NF, NS2 = 8, 4, 56, 32
    STG = 16384; NB2 = nb2; ROT = 3
    V_F = 32; V_S = 96; XV = 128; PV = 144; T = 176
    RESV = 160 if rs_early else 64
    def resv(i): return (160 + i if i < 16 else 216 + i) if rs_early else 64 + i
    XV0 = 144 if rs_early else XV
    BW = 0; BX = 32
    def bx_reg(s, b): return ar(BX + ((s % XR) * 2 + b) * 4, 4)
    def bw_reg(tau): return BW + (tau % RB) * 4
    NSTEP = NF + NS2; NSTG = NSTEP // 2
    def nb_of(s): return NBF if s < NF else NBS
    blocks = [(s, t) for s in range(NSTEP + 4) for t in range(nb_of(s))]
    first_tau = {}
    for i, (s, t) in enumerate(blocks): first_tau.setdefault(s, i)
    for s in range(-40, 0): first_tau[s] = s * NBF
    RORD = list(range(10))
    def phys(sg): return RORD[sg % 10] * STG
    WV = [2, 3, 15, 28]
    TRV = 208
    TV = (220, 221, 222)
    def bw_op(sg, q, static=True):
        g, h = q >> 1, q & 1
        pre = [f"s_add_u32 m0, s46, {phys(sg)}"] if q == 0 else []
        post = []
        so, inc = ("s94", "s97") if g else ("s92", "s95")
        if h == 1: post = [f"s_add_u32 {so}, {so}, {inc}"]
        if h == 1 and "bw28" in abl and sg == 13: post = [f"s_mul_i32 s21, {inc}, 13", f"s_sub_u32 {so}, {so}, s21"]
        if q == 0 and sg == NF // 2: pre += ["s_mov_b32 s92, s93", "s_mov_b64 s[84:85], s[64:65]", "s_mov_b32 s86, s66"]
        srd = "s[88:91]" if g else "s[84:87]"
        return pre, [VM(f"buffer_load_dwordx4 v{WV[q]}, {srd}, {so} offen offset:{q*1024} sc1 lds", ("W2", sg))], post
    def bx_op(s, b):
        post = []
        if b == 1: post = [f"s_mov_b32 s42, {112*KS}"] if s == NF - 1 else [f"s_add_u32 s42, s42, {KS}"]
        if b == 1 and "bw28" in abl and s == 27: post = [f"s_sub_u32 s42, s42, {27*KS}"]
        r = BX + ((s % XR) * 2 + b) * 4
        if s < NF and s % 7 == 3:
            offs = ((2560, 0) if b else (512, 1536)) if PAD else ((1024, 0) if b else (512, 1536))
            return [], [VM(f"buffer_load_dwordx2 {ar(r + 2*h, 2)}, v{TV[2]}, s[48:51], s42 offen offset:{offs[h]} sc1", ("X2", s)) for h in range(2)], post
        return [], [VM(f"buffer_load_dwordx4 {ar(r, 4)}, v{TV[b]}, s[48:51], s42 offen sc1", ("X2", s))], post
    def frag(tau):
        s, t = blocks[tau]
        if not bchain: return s, t
        u = (s % 2) * nb_of(s) + t
        return (s // 2) * 2 + u % 2, u // 2
    def btr(tau, p):
        s, t = frag(tau)
        ph = phys(s // 2)
        off = ph % 65536 + ((s % 2) * 2 + p) * 4096 + (t >> 2) * 2048
        return f"ds_read_b64_tr_b16 {ar(bw_reg(tau) + 2*p, 2)}, v{TRV + 4 * (ph // 65536) + (t & 3)} offset:{off}"
    def bar_tau(sg): return first_tau[2 * sg + 2] - LB
    bsetup = L(f"""
    s_bfe_u32 s26, s2, 0x20001
    s_lshl_b32 s26, s26, 2
    s_bfe_u32 s27, s2, 0x20003
    s_add_u32 s26, s26, s27
    s_and_b32 s27, s2, 1
    s_lshl_b32 s28, s4, 1
    s_add_u32 s28, s28, s27
    s_lshl_b32 s29, s26, 3
    s_lshl_b32 s31, s3, 1
    s_add_u32 s29, s29, s31
    """)
    bsetup_o = L(f"""
    s_lshl_b32 s40, s29, 15
    s_lshl_b32 s41, s28, 7
    s_add_u32 s40, s40, s41
    s_add_u32 s41, s40, 0x8000
    v_and_b32 v0, 15, v1
    v_lshlrev_b32 v0, 11, v0
    v_bfe_u32 v9, v1, 4, 1
    v_lshl_add_u32 v0, v9, 5, v0
    v_lshrrev_b32 v9, 5, v1
    v_lshl_add_u32 v0, v9, 4, v0
    """)
    rload = L(f"""
    v_and_b32 v26, 15, v1
    v_bfe_u32 v27, v1, 4, 1
    v_lshl_add_u32 v26, v27, 5, v26
    v_lshrrev_b32 v27, 5, v1
    v_lshl_add_u32 v26, v27, 4, v26
    v_cmp_le_u32 s[32:33], 16, v26
    v_cmp_le_u32 s[34:35], 24, v26
    v_lshlrev_b32 v26, 4, v26
    v_mov_b32 v24, {SKIP}
    s_mul_i32 s36, s29, {PSTR//2}
    s_mul_i32 s37, s28, {2*KS}
    v_cndmask_b32 v27, 0, v24, s[32:33]
    v_cndmask_b32 v24, 0, v24, s[34:35]
    v_add_u32 v27, v27, v26
    v_add_u32 v26, v24, v26
    s_add_u32 s36, s36, s37
    s_add_u32 s36, s36, {WS_XR}
    s_add_u32 s37, s36, {KS}
    """)
    for q in range(4):
        rload.append(VM(f"buffer_load_dwordx4 a[{A_R+4*q}:{A_R+4*q+3}], v{26+q//2}, s[8:11], s{36+q%2} offen offset:{ODD*(q//2)} sc1", ("R", q)))
    pub = []
    def apack(dst, t):
        r = A_QKV + (t * 4 + 3) * 4
        return [f"v_accvgpr_read_b32 v9, a{r}", f"v_accvgpr_read_b32 v10, a{r+1}", f"v_accvgpr_read_b32 v11, a{r+2}", f"v_accvgpr_read_b32 v{dst+1}, a{r+3}",
                f"v_cvt_pk_bf16_f32 v{dst}, v9, v10", f"v_cvt_pk_bf16_f32 v{dst+1}, v11, v{dst+1}"]
    pub += apack(16, 2) + apack(18, 3) + [VM("buffer_store_dwordx4 v[16:19], v31, s[80:83], s32 offen sc0 sc1", ("H", 0))]
    pub += apack(24, 4) + apack(26, 5) + [VM("buffer_store_dwordx4 v[24:27], v31, s[80:83], s32 offen offset:1024 sc0 sc1", ("H", 1))]
    wsetup = L(f"""
    v_and_b32 v26, 6, v25
    v_and_b32 v27, 7, v1
    v_xor_b32 v26, v26, v27
    v_lshlrev_b32 v26, 4, v26
    s_lshl_b32 s93, s3, 4
    s_mul_i32 s31, s27, {NF*32}
    s_add_u32 s31, s31, s93
    """) + [f"s_add_u32 s68, s8, {WS_WB}\ns_addc_u32 s69, s9, 0", f"s_add_u32 s70, s68, {WB_WO}\ns_addc_u32 s71, s69, 0"] + L(f"""
    s_mov_b32 s87, 0x20000
    s_mov_b32 s91, 0x20000
    s_lshl_b32 s46, s3, 12
    """)
    groups = []
    for g, (srd, so, inc, v) in enumerate(((84, 92, 95, (2, 3)), (88, 94, 97, (15, 28)))):
        x = L(f"""
        s_xor_b32 s72, s28, {g}
        s_lshl_b32 s62, s72, 7
        s_lshr_b32 s63, s72, 3
        s_lshl_b32 s63, s63, 8
        s_and_b32 s72, s72, 7
        """)
        y = L(f"""
        s_cmp_eq_u32 s72, {3 if usewb else 9}
        s_cselect_b32 s62, s63, s62
        s_movk_i32 s63, 2048
        s_cselect_b32 s63, 512, s63
        s_mov_b32 s{srd+2}, {3584*2048}
        s_cselect_b32 s{srd+2}, {WB_BYTES - WB_WO}, s{srd+2}
        s_cselect_b64 s[{srd}:{srd+1}], s[70:71], s[60:61]
        """)
        if g == 0: y += L(f"""
        s_cselect_b64 s[64:65], s[68:69], s[56:57]
        s_mov_b32 s66, 0x200000
        s_cselect_b32 s66, {WB_WO}, s66
        """)
        z = L(f"""
        v_mul_lo_u32 v{v[0]}, v25, s63
        v_add3_u32 v{v[0]}, v{v[0]}, v26, s62
        s_lshl_b32 s72, s63, 3
        s_sub_u32 s72, s72, 1024
        v_add_u32 v{v[1]}, s72, v{v[0]}
        s_mul_i32 s{so}, s31, s63
        s_lshl_b32 s{inc}, s63, 6
        """)
        if g == 0: z.append("s_mul_i32 s93, s93, s63")
        else: z += ["s_sub_u32 s88, s88, 2048\ns_subb_u32 s89, s89, 0", "s_add_u32 s90, s90, 2048"]
        wsetup += x + ["\n".join(y)] + z
    bsetup2 = L(f"""
    s_mov_b64 s[0:1], s[54:55]
    s_mul_i32 s42, s27, {NF*KS}
    s_mov_b32 s54, 0x400000
    s_mov_b32 s55, 0x20000
    """)
    bsetup2 += L(f"""
    s_lshr_b32 s31, s26, 1
    s_and_b32 s72, s26, 1
    s_lshl_b32 s72, s72, 3
    s_add_u32 s72, s72, s4
    s_lshl_b32 s70, s72, 1
    s_add_u32 s70, s70, s27
    s_xor_b32 s71, s70, 1
    s_mul_i32 s70, s70, {KS}
    s_mul_i32 s71, s71, {KS}
    s_add_u32 s70, s70, {exoff}
    s_add_u32 s71, s71, {exoff}
    s_mov_b32 s10, {max(exoff + XN_BYTES, WS_XR + XN_BYTES)}
    s_lshl_b32 s30, s31, 1
    s_add_u32 s30, s30, s27
    s_lshl_b32 s30, s30, 4
    s_add_u32 s30, s30, s72
    s_lshl_b32 s30, s30, 7
    s_lshl_b32 s68, s2, 2
    s_add_u32 s68, s68, s3
    s_xor_b32 s69, s68, 4
    s_lshl_b32 s68, s68, 8
    s_lshl_b32 s69, s69, 8
    """)
    bpost = L(f"""
    s_lshr_b32 s62, s79, 4
    s_lshl_b32 s62, s62, 11
    s_and_b32 s63, s79, 15
    s_lshl_b32 s63, s63, 2
    s_add_u32 s62, s62, s63
    s_add_u32 s62, s62, {FL_H}
    s_lshl_b32 s63, s4, 12
    s_lshl_b32 s72, s5, 2
    s_add_u32 s63, s63, s72
    s_add_u32 s63, s63, {FL_O}
    """) + ["\n".join(L(f"""
    s_cmp_eq_u32 s3, 0
    s_cselect_b32 s62, s62, {FL_BYTES}
    s_cselect_b32 s63, s63, {FL_BYTES}
    """))]
    bsetup2 += L(f"""
    s_sub_u32 s72, s29, s6
    s_mul_i32 s72, s72, {PSTR//2}
    v_add_u32 v{TV[0]}, s72, v7
    v_add_u32 v{TV[1]}, s72, v30
    s_mul_i32 s72, s29, {PSTR//2}
    v_lshl_add_u32 v{TV[2]}, v1, 3, s72
    s_sub_u32 s72, s31, s4
    s_mul_i32 s72, s72, {8*PSTR}
    v_add_u32 v224, s72, v7
    v_add_u32 v225, s72, v30
    v_and_b32 v226, 15, v1
    v_lshlrev_b32 v226, 2, v226
    s_and_b32 s47, s30, {(~(15 << 7) | ((hrep - 1) << 7)) & 0xffffffff:#x}
    s_add_u32 s47, s47, {FL_H}
    s_and_b32 s30, s30, {(~(15 << 7) | ((orep // 2 - 1) << 7)) & 0xffffffff:#x}
    s_add_u32 s30, s30, {FL_O}
    """)
    bsetup3 = L(f"""
    v_lshrrev_b32 v92, 5, v1
    v_lshlrev_b32 v{TRV}, 10, v92
    v_bfe_u32 v92, v1, 2, 3
    v_lshl_add_u32 v{TRV}, v92, 7, v{TRV}
    v_lshrrev_b32 v92, 1, v92
    v_lshl_add_u32 v{TRV}, v92, 5, v{TRV}
    v_and_b32 v92, 3, v1
    v_lshl_add_u32 v{TRV}, v92, 3, v{TRV}
    v_xor_b32 v{TRV+1}, 32, v{TRV}
    v_xor_b32 v{TRV+2}, 64, v{TRV}
    v_xor_b32 v{TRV+3}, 96, v{TRV}
    """)
    blate = [f"v_add_u32 v{TRV+4+i}, 0x10000, v{TRV+i}" for i in range(8)] + L(f"""
    v_and_b32 v24, 31, v1
    v_and_b32 v26, {16 | (orep // 2 - 1)}, v24
    v_lshlrev_b32 v26, 7, v26
    v_lshlrev_b32 v25, 7, v24
    v_lshlrev_b32 v24, 2, v24
    v_lshlrev_b32 v20, 2, v1
    """)
    RS = [f"v_accvgpr_read_b32 v{XV0+i}, a{A_R+i}" for i in range(16)] + ["s_nop 0"]
    for q in range(4):
        r = XV0 + q * 4
        RS += [f"v_permlane16_swap_b32 v{r}, v{r+2}", f"v_permlane16_swap_b32 v{r+1}, v{r+3}"]
    for b in range(2):
        for tp in range(2):
            r = XV0 + (b * 2 + tp) * 4
            for h in range(2):
                c = ((2 * tp + h) * 2 + b) * 4
                for e in range(2):
                    RS += [f"v_lshlrev_b32 v{resv(c+2*e)}, 16, v{r+2*h+e}", f"v_and_b32 v{resv(c+2*e+1)}, 0xffff0000, v{r+2*h+e}"]
    RD = []
    if rlds:
        RD = L(f"""
        v_lshrrev_b32 v92, 3, v1
        v_and_b32 v93, 7, v1
        v_xor_b32 v93, v93, v92
        v_lshlrev_b32 v93, 4, v93
        v_lshl_add_u32 v93, v92, 11, v93
        v_add_u32 v94, {0x4000 - 1024}, v93
        s_mov_b64 s[32:33], s[0:1]
        s_mov_b32 s34, 0x400000
        s_mov_b32 s35, 0x20000
        s_add_u32 m0, s46, {9 * STG}
        """)
        for q in range(4):
            if q == 2: RD += [f"s_add_u32 m0, s46, {9 * STG + 2048}", "s_nop 0"]
            elif q == 0: RD += ["s_nop 0"]
            RD.append(VM(f"buffer_load_dwordx4 v{93 + q % 2}, s[32:35], s{40 + q // 2} offen offset:{1024 * (q % 2)} lds", ("R", q)))
        RS = L(f"""
        v_and_b32 v92, 15, v1
        v_lshrrev_b32 v93, 5, v1
        v_and_b32 v94, 7, v1
        v_xor_b32 v93, v93, v94
        v_lshlrev_b32 v93, 4, v93
        v_lshl_add_u32 v93, v92, 7, v93
        v_bfe_u32 v92, v1, 4, 1
        v_lshl_add_u32 v93, v92, 3, v93
        s_add_u32 s36, s46, {9 * STG}
        v_add_u32 v92, s36, v93
        v_xor_b32 v93, 32, v92
        v_xor_b32 v94, 64, v92
        v_xor_b32 v95, 96, v92
        """) + [VW([("R", q) for q in range(4)])]
        for b in range(2):
            for t in range(4): RS.append(f"ds_read_b64 v[{XV0+(b*4+t)*2}:{XV0+(b*4+t)*2+1}], v{92+t} offset:{b*2048}")
        RS2 = ["s_waitcnt lgkmcnt(0)"]
        for b in range(2):
            for t in range(4):
                c = (t * 2 + b) * 4; r = XV0 + (b * 4 + t) * 2
                for e in range(2): RS2 += [f"v_lshlrev_b32 v{resv(c+2*e)}, 16, v{r+e}", f"v_and_b32 v{resv(c+2*e+1)}, 0xffff0000, v{r+e}"]
    prew = []
    for sg in range(npre):
        for q in range(4):
            pre, d, post = bw_op(sg, q, True); prew.append((pre, d, post))

    NS = 32; BARH = 36
    ops = []
    for st in range(NS):
        pr = st // 2
        if st >= pro_w:
            for i in range(5): ops.append(((pr - 2) * 40 + wp[0] + ((st % 2) * 5 + i) * wp[1], "W", st, i))
        if st >= pro_x:
            for b in range(4): ops.append((max((pr - 1) * 40 + xp[0] + ((st % 2) * 4 + b) * xp[1], (lp[1] + 1) if fast else -99), "X", st, b))
    ops.sort(key=lambda o: o[0])
    place = {}
    prev = -1; prevf = -ramp
    for nom, kind, st, i in ops:
        prevf = max(nom, prevf + ramp)
        p = max(int(prevf), prev + 1)
        place[p] = (kind, st, i); prev = p
    G0 = 14 * 40
    J = lambda t: ["\n".join(L(t))]
    early = L(f"""
    s_lshl_b32 s96, s77, 10
    s_add_u32 s96, s96, {FL_G}
    v_lshlrev_b32 v24, 4, v1
    """) + [VM("buffer_load_dwordx4 v[16:19], v24, s[80:83], s96 offen sc1", ("G", 0))] + \
        J(f"s_cmp_eq_u32 s78, 0\ns_cselect_b32 s67, s90, {FL_BYTES}") + J(f"s_getpc_b64 s[92:93]\n{name}_pc:") + L(f"""
    s_mov_b32 s94, code_end - {name}_pc
    s_mov_b32 s95, 0x20000
    s_lshl_b32 s91, s7, 2
    s_add_u32 s91, s91, s3
    s_lshl_b32 s91, s91, 13
    """) + [VM(f"buffer_load_dword a{A_DUM}, v15, s[92:95], s91 offen", ("P", 99))]
    if l2pf:
        early += L(f"""
        s_mov_b64 s[40:41], s[60:61]
        s_and_b32 s38, s2, 1
        s_mul_i32 s38, s38, {1792*2048}
        s_add_u32 s1, s38, {1792*2048}
        s_add_u32 s38, s38, s91
        s_add_u32 s0, s38, {npre*64*2048}
        v_mov_b32 v0, v15
        """)
    gcheck = [VW([("G", 0)])] + J(f"""
    {name}_g_back:
    v_cmp_eq_u32 vcc, v16, v22
    v_cmp_eq_u32 s[32:33], v17, v22
    v_cmp_eq_u32 s[34:35], v18, v22
    v_cmp_eq_u32 s[36:37], v19, v22
    s_and_b64 vcc, vcc, s[32:33]
    s_and_b64 s[34:35], s[34:35], s[36:37]
    s_and_b64 vcc, vcc, s[34:35]
    s_cmp_eq_u64 vcc, exec
    s_cbranch_scc0 {name}_g_spin
    {name}_g_out:
    """) + [VM("buffer_store_dword v22, v23, s[80:83], s67 offen sc0 sc1", ("EU", 0))]
    late = L(f"""
    s_lshl_b32 s0, s2, 7
    s_add_u32 s0, s0, {FL_H}
    v_and_b32 v10, 1, v1
    v_lshlrev_b32 v10, 16, v10
    """) + [VM(f"buffer_load_dword a{A_DUM}, v10, s[80:83], s0 offen sc0 sc1", ("P", 95))]
    hflag = [VW([("H", 0), ("H", 1)]), VM("buffer_store_dword v22, v23, s[80:83], s33 offen sc0 sc1", ("F", 0))]
    first_part = early + bsetup + wsetup + gcheck
    if rdirect is not None:
        rd = bsetup_o + ["s_mov_b64 s[32:33], s[54:55]", "s_mov_b32 s34, 0x400000", "s_mov_b32 s35, 0x20000"] + \
            [VM(f"buffer_load_dwordx4 a[{A_R+4*q}:{A_R+4*q+3}], v0, s[32:35], s{40+q//2} offen offset:{(q%2)*64}", ("R", q)) for q in range(4)]
        rd = [x.replace("v9", "v26") if isinstance(x, str) else x for x in rd]
        bsetup_o = []
        if rlds: rd = [x for x in rd if isinstance(x, str) and x.startswith("s_") and ("s40" in x or "s41" in x)]
        if rdirect == "pre": first_part = early + bsetup + rd + wsetup + gcheck; rload = []
        else: rload = rd
    side = [(G0, x) for x in first_part + rload + epi_setup(1) + epi_setup(2)] + [(G0 + 54, x) for x in pub] + [(G0, x) for x in late + bsetup_o] \
        + [(G0 + hfp, x) for x in hflag]
    nafter = len(side) - len(first_part)
    pmin = [G0] * 2 + [G0 + 37] * 3 + [G0 + 45] * 2
    def pair_code(pr):
        R = []
        it = pr // 2
        static = it == 0 or it == 7
        for hb in range(40):
            if istamp and hb % 20 == 0: R += ["s_memtime s[100:101]", "s_waitcnt lgkmcnt(0)", "s_mov_b32 m0, s99", "v_writelane_b32 v29, s100, m0", "s_add_u32 s99, s99, 1"]
            gp = pr * 40 + hb
            t, e = hb // 2, hb % 2
            fill = [[], [], [], []]
            if hb == BARH and pr < 15:
                need = [("W", 2 * pr + 2), ("W", 2 * pr + 3)]
                if pr % 2 == 1 and 0 < it < 7: need += [("Z", i) for i in range(7)]
                fill[0] += [VW(need), "s_barrier"]
                if pr % 2 == 1 and 0 < it < 7: fill[3] += [VM("buffer_store_dword v22, v27, s[80:83], s92 offen sc0 sc1", ("GF", 0)), f"s_mov_b32 s92, {FL_BYTES}"]
            if pr == 15 and hb == 4 and nin > 5: fill[2] += ["s_barrier"]
            if not (pr == 15 and hb >= BARH):
                tn = (t + 2) % 20
                fill[0].append(trread(tn, e, 0)); fill[1].append(trread(tn, e, 1))
            if gp in place:
                kind, st, i = place[gp]
                m0, d, adv = dma_ops(st, i, static) if kind == "W" else x_ops(st, i)
                if m0: fill[1].append(m0)
                fill[2].append(d)
                if adv: fill[3].append(adv)
            fill[3] += aev.get((gp // 20, gp % 20), [])
            if fast and gp == lp[0]: fill[3] += [VM(f"buffer_load_dword v28, v19, s[80:83], s97 offen {pollf}", ("LP", 0))]
            if fast and gp == lp[1]:
                fill[3] += [VW([("LP", 0)]), f"{name}_l_back:", "v_cmp_eq_u32 vcc, v28, v22", "s_cmp_eq_u64 vcc, exec", f"s_cbranch_scc0 {name}_l_spin", f"{name}_l_out:"]
            if hb == 6 and it < 7:
                fill[0] += [f"s_add_u32 s43, s43, {PB}"]
                fill[3] += [f"s_cmp_ge_u32 s43, {NBUF*STAGE}", "s_cselect_b32 s43, 0, s43"]
            if hb == 8 and 0 < it < 7:
                fill[0] += [f"s_add_u32 s44, s44, {PB}"]
                fill[3] += ["s_cmp_ge_u32 s44, s47", "s_cselect_b32 s44, s46, s44"]
            if hb == 8 and pr == 1: fill[3] += [f"s_add_u32 s44, s46, {3 * PB}"]
            if hb == BARH - 1 and pr < 15:
                bs_ = "s43" if it < 7 else str(((pr + 1) % 4) * PB)
                fill[2] += [f"v_add_u32 v12, {bs_}, v9", f"v_add_u32 v13, {bs_}, v10"]
                fill[3] += [f"v_add_u32 v14, {bs_}, v11"]
            if hb == 10 and pr % 2 == (1 if pnt0 else 0) and 0 < it < 7:
                fill[2] += ["s_cmp_eq_u32 s45, s1", "s_cselect_b64 s[84:85], s[56:57], s[84:85]"]
                fill[3] += ["s_cmp_eq_u32 s45, s1", "s_cselect_b32 s69, 0x200000, s69", "s_cselect_b32 s89, s0, s89"]
            if hb == ppos and pr < 14:
                fill[2] += [f"s_bitcmp1_b32 s68, {pr % 2}", "s_cselect_b32 s86, s69, 0"]
                if pnt0 and pr < 2:
                    fill[2] += ["s_cmp_eq_u32 s3, 3", "s_cselect_b32 s86, 0, s86"]
                    fill[3] += [VM(f"buffer_load_dword a{A_DUM}, v8, s[84:87], s89 offen nt", ("P", pr)), "s_add_u32 s89, s89, s88", "s_cmp_eq_u32 s3, 3", "s_cselect_b32 s89, s0, s89"]
                else: fill[3] += [VM(f"buffer_load_dword a{A_DUM}, v8, s[84:87], s89 offen", ("P", pr)), "s_add_u32 s89, s89, s88"]
            if hoist and pr % 2 == 1 and 0 < it < 7:
                if hb == 37: fill[2] += ["s_sub_u32 s45, s45, 1"]
                if hb == 39: fill[3] += ["s_cmp_lg_u32 s45, 0"]
            if gp - G0 in l2pf:
                fill[2] += ["s_mov_b32 s42, s1", "s_mov_b32 s43, 0x20000"]
                fill[3] += [VM(f"buffer_load_dword a{A_DUM}, v0, s[40:43], s0 offen", ("P", 500 + gp)), "s_add_u32 s0, s0, 0x100000"]
            if gp >= G0:
                for i in sdens:
                    if side and side[0][0] <= gp: fill[i].append(side.pop(0)[1])
                k_ = 4 * npre - len(prew)
                if k_ < 4 * nin and gp % pstep == pstep - 1 and gp >= pmin[k_ // 4] and len(side) <= nafter:
                    pre, d, post = prew.pop(0)
                    fill[0] += pre; fill[1] += d + post
            if e == 0:
                lg = "lgkmcnt(0)" if (pr == 15 and t == 19) else "lgkmcnt(4)"
                R.append(VW([("X", 2 * pr), ("X", 2 * pr + 1)], lg) if hb == 0 else f"s_waitcnt {lg}")
            bs = ([0, 1, 2, 3] if t % 2 == 0 else [3, 2, 1, 0])[2 * e:2 * e + 2]
            for i, (b, k) in enumerate(((bs[0], 0), (bs[0], 1), (bs[1], 1), (bs[1], 0))):
                w = ar(w_reg(t, k), 4); x = x_reg(2 * pr + k, b); c = acc_reg(t, b)
                cin = "0" if (pr == 0 and i % 2 == 0) else c
                if t in (4, 5): w, x = x, w
                R.append(f"v_mfma_f32_16x16x32_bf16 {c}, {w}, {x}, {cin}")
                R += fill[i]
        return R
    for it in range(8):
        tr.add("first" if it == 0 else ("last" if it == 7 else "loop"), pair_code(2 * it) + pair_code(2 * it + 1))
    assert not side, len(side)
    epi = PST("a_end") + (["s_memtime s[100:101]", "s_waitcnt lgkmcnt(0)", "v_writelane_b32 v29, s100, 32"] if istamp else []) + epilogue(name, mimic, hpost, PST if estamp else (lambda t: []), hp, sing, hrep, ilv)
    out = []; k = 0
    started = prepos == "all"
    if started and prew: out.append("s_barrier")
    for r in epi:
        if r == "@HCHECK":
            for pre, d, post in prew: out += pre + (["s_nop 0"] if pre else []) + d + post
            prew = []
            if rs_early and not rs_late: out += [VW([("R", q) for q in range(4)])] + RS + bsetup3 + blate[:8]
            if twop:
                xb = []
                for s_ in range(bpro_x):
                    for b in range(2):
                        _, d, post = bx_op(s_, b); xb += d + post
                XB = [x.text if isinstance(x, VM) else x for x in xb]
                out += PST("preHP") + [VW([("HP", 0)]), "\n".join(["v_cmp_eq_u32 vcc, v227, v22", "s_cmp_eq_u64 vcc, exec", "s_cselect_b32 s36, 1, 0", f"s_cbranch_scc0 {name}_h_skip"])]
                out += xb + [f"{name}_h_skip:"] + RS + bsetup3 + blate[:8]
                continue
            out += PST("preHP") + [VW([("HP", 0)]), "\n".join([f"{name}_h_back:", "v_cmp_eq_u32 vcc, v227, v22", "s_cmp_eq_u64 vcc, exec", f"s_cbranch_scc0 {name}_h_spin", f"{name}_h_out:"])] + PST("hpoll")
            for s_ in range(bpro_x):
                for b in range(2):
                    _, d, post = bx_op(s_, b); out += d + post
                if rs_late and s_ == 1: out += RS + [x.replace('v92', 'v91') for x in bsetup3] + blate[:8] + (RS2 if rlds else [])
            continue
        if r == "@HLATE":
            if twop and bpre:
                assert nin >= bper and hpost == "s"
                for tau in range(LB): out += [btr(tau, 0), btr(tau, 1)]
                out += blate[8:]
            if twop: out += ["\n".join(["s_cmp_eq_u32 s36, 0", f"s_cbranch_scc1 {name}_h_spin", f"{name}_h_ret:"])] + PST("hpoll")
            continue
        if r == "@HLOAD":
            out.append(VM(f"buffer_load_dword v227, v226, s[80:83], s47 offen {hpf}", ("HP", 0)))
            continue
        out.append(r)
        if isinstance(r, VM) and r.tag == ("S", 1): out += bpost + ([] if b2late else bsetup2)
        if isinstance(r, VM) and r.tag == ("HF", 0) and b2late: out += bsetup2
        if isinstance(r, VM) and r.tag == ("HF", 0): out += RD
        if isinstance(r, VM) and r.tag == (("HF", 0) if prepos == "post" else ("S", 1)): started = True
        if not started: continue
        k += 1
        if prew and k % wspread == 0 and isinstance(r, str) and r.startswith("v_"):
            pre, d, post = prew.pop(0); out += pre + (["s_nop 0"] if pre else []) + d + post
        elif prew and k % wspread == 0: k -= 1
    assert not prew
    tr.add("epi", out)

    bops = []
    for sg in range(npre, NSTG):
        n = nb_of(2 * sg) // 2
        isg = sg - (slead if (slead and sg >= NF // 2) else lead_end)
        span = first_tau[2 * isg + 4] - first_tau[2 * isg + 2]
        for q in range(n):
            pos = bar_tau(isg) + 1 + q * (span // n)
            if sg < NF // 2 and npre > lead_end:
                last = bar_tau(NF // 2 - lead_end)
                pos = wst + int(((sg - npre) * 4 + q) * (last - wst) / ((NF // 2 - npre) * 4))
                assert pos > bar_tau(sg - (NB2 - 1))
            bops.append((pos, 0, "W", sg, q))
    for s in range(bpro_x, NSTEP):
        isx = s - (XR - 2 if bchain else XR - 1)
        for b in range(2): bops.append((first_tau[isx] + b * (nb_of(max(isx, 0)) // 2), 1, "X", s, b))
    def need(o): return (2 * o[3] - 1 if o[2] == "W" else o[3], o[4])
    early = sorted([o for o in bops if o[0] < 0], key=need)
    late = sorted([o for o in bops if o[0] >= 0])
    bplace = {}; prev = -1
    for o in early + late:
        p = max(o[0], prev + 1)
        if pack and p < first_tau[NF] and p >= 16: p |= 1
        bplace[p] = o; prev = p
    bpro = PST("epi_end") + ([] if rs_early else bsetup3 + blate[:8]) + [VW([("W2", e_) for e_ in range(bper)]), "s_barrier"]
    for tau in range(LB): bpro += [btr(tau, 0), btr(tau, 1)]
    bpro += blate[8:] + PST("b_loop")
    if twop and bpre: bpro = [x for x in bpro if isinstance(x, str) and ("s_mem" in x or "writelane" in x or x == "s_waitcnt lgkmcnt(0)")]
    tr.add("bpro", bpro)

    IT = XR
    ev = {}
    def add_ev(s, t, i, items): ev.setdefault((s, t, i), []).extend(items)
    SCs = NF + sc
    ES = []; O = V_F + 32
    ES.append(f"v_max3_f32 v21, |v{O}|, |v{O+1}|, |v{O+2}|")
    ES.append(f"v_max3_f32 v26, |v{O+3}|, |v{O+4}|, |v{O+5}|")
    for i in range(6, 30, 4):
        ES.append(f"v_max3_f32 v21, |v{O+i}|, |v{O+i+1}|, v21")
        ES.append(f"v_max3_f32 v26, |v{O+i+2}|, |v{O+i+3}|, v26")
    ES.append(f"v_max3_f32 v21, |v{O+30}|, |v{O+31}|, v21")
    ES += ["v_max_f32 v21, v21, v26", "v_frexp_exp_i32_f32 v21, v21", "v_max_i32 v21, 0xffffff9c, v21",
           "v_sub_u32 v26, 15, v21", "v_ldexp_f32 v26, 1.0, v26", "v_subrev_u32 v21, 15, v21", "v_ldexp_f32 v21, 1.0, v21"]
    for q in range(4):
        for i in range(4): ES.append(f"v_fma_mixlo_f16 v{T+4*q+i}, v{O+8*q+2*i}, v26, 0")
        for i in range(4): ES.append(f"v_fma_mixhi_f16 v{T+4*q+i}, v{O+8*q+2*i+1}, v26, 0")
        ES.append("s_nop 0")
        ES.append(VM(f"buffer_store_dwordx4 v[{T+4*q}:{T+4*q+3}], v{224+(q&1)}, s[8:11], s70 offen offset:{(q>>1)*PSTR} {efl}", ("E", q)))
    k = 0; pos = 4
    while k < len(ES):
        for i in range(2):
            add_ev(NF + pos // 4, pos % 4, i, ES[k:k + esp]); k += esp
        pos += 1
    assert pos // 4 < sf
    add_ev(NF + sf, 1, 1, [VW([("E", q) for q in range(4)]), VM("buffer_store_dword v21, v20, s[80:83], s68 offen sc0 sc1", ("F2", 0))])
    add_ev(NF + sp, 1, 1, [VM("buffer_load_dword v26, v20, s[80:83], s69 offen sc0 sc1", ("G2", 0))])
    add_ev(SCs, 1, 1, [VW([("G2", 0)]), f"{name}_e_back:", "v_cmp_ne_u32 vcc, 0, v26", "s_cmp_eq_u64 vcc, exec", f"s_cbranch_scc0 {name}_e_spin", f"{name}_e_out:"])
    for q in range(4):
        r = PV + q * 4
        pos = int((0.5 + q * dst) * 4) | 1
        add_ev(SCs + pos // 4, pos % 4, 0, [VM(f"buffer_load_dwordx4 v[{r}:{r+3}], v{224+(q&1)}, s[8:11], s71 offen offset:{(q>>1)*PSTR} {dfl}", ("D2", q))])
    def rnd(lo, n):
        o = []
        if not mimic: return o
        for i in range(lo, lo + n, 2):
            o += [f"v_cvt_pk_bf16_f32 v{i+1}, v{i}, v{i+1}", f"v_lshlrev_b32 v{i}, 16, v{i+1}", f"v_and_b32 v{i+1}, 0xffff0000, v{i+1}"]
        return o
    k = 0; pos = 4 * (sf + 1)
    while k < len(RS) and not rs_early:
        for i in range(2):
            add_ev(NF + pos // 4, pos % 4, i, RS[k:k + 1]); k += 1
        pos += 1
    if olds:
        OSET = L(f"""
        s_mul_i32 s21, s3, 4608
        s_add_u32 s21, s21, {7 * STG}
        v_and_b32 v4, 15, v1
        v_mul_u32_u24 v4, 144, v4
        v_lshrrev_b32 v5, 4, v1
        v_lshl_add_u32 v4, v5, 3, v4
        v_add_u32 v4, s21, v4
        v_lshrrev_b32 v8, 3, v1
        v_and_b32 v9, 7, v1
        v_mul_u32_u24 v5, 144, v8
        v_lshl_add_u32 v5, v9, 4, v5
        v_add_u32 v5, s21, v5
        v_lshlrev_b32 v6, 11, v8
        v_lshl_add_u32 v6, v9, 4, v6
        v_add_u32 v8, 0x4000, v6
        """)
        for n_, x in enumerate(OSET): add_ev(NF + sf + 1 + n_ // 4, n_ % 4, 1, [x])
    elif ofull is not None:
        add_ev(NF + sf + 1, 0, 0, ["v_and_b32 v6, 0x3fff, v0"]); add_ev(NF + sf + 1, 0, 1, ["v_bfe_u32 v5, v1, 3, 1"])
        add_ev(NF + sf + 1, 2, 0, ["v_lshl_add_u32 v6, v5, 6, v6"]); add_ev(NF + sf + 1, 2, 1, ["v_add_u32 v5, 0x4000, v6"])
    VS = []
    for h in range(2):
        lo = 16 * h
        VS.append(VW([("D2", q) for q in range(2 * h, 2 * h + 2)]))
        VS += [f"v_fma_mix_f32 v{V_F+i}, v{PV+i//2}, v26, v{V_F+i} op_sel:[{i&1},0,0] op_sel_hi:[1,0,0]" for i in range(lo, lo + 16)]
        if vmimic: VS += rnd(V_F + lo, 16)
        if vpk: VS += [f"v_pk_mul_f32 v[{T+i}:{T+i+1}], v[{V_F+i}:{V_F+i+1}], s[12:13]" for i in range(lo, lo + 16, 2)]
        else: VS += [f"v_mul_f32 v{T+i}, s12, v{V_F+i}" for i in range(lo, lo + 16)]
        VS += [f"v_exp_f32 v{T+i}, v{T+i}" for i in range(lo, lo + 16)]
        if vpk: VS += [f"v_pk_add_f32 v[{T+i}:{T+i+1}], v[{T+i}:{T+i+1}], s[14:15]" for i in range(lo, lo + 16, 2)]
        else: VS += [f"v_add_f32 v{T+i}, 1.0, v{T+i}" for i in range(lo, lo + 16)]
        VS += [f"v_rcp_f32 v{T+i}, v{T+i}" for i in range(lo, lo + 16)]
        if vpk: VS += [f"v_pk_mul_f32 v[{V_F+i}:{V_F+i+1}], v[{V_F+i}:{V_F+i+1}], v[{T+i}:{T+i+1}]" for i in range(lo, lo + 16, 2)]
        else: VS += [f"v_mul_f32 v{V_F+i}, v{V_F+i}, v{T+i}" for i in range(lo, lo + 16)]
        if vmimic: VS += rnd(V_F + lo, 16)
    VSTART = SCs + vskip
    vi = [0]
    for p_, o_ in bplace.items():
        if o_[2] == "W" and o_[3] >= NB2:
            old = o_[3] - NB2
            nb_ = old + 1
            while nb_ % bper != bper - 1: nb_ += 1
            assert p_ > bar_tau(nb_) + 1, (o_, p_)
    defer = []
    def bstep(s):
        R = []
        if fstamp and s % 2 == 0 and s <= 64: R += ["s_memtime s[100:101]", "s_waitcnt lgkmcnt(0)", f"v_writelane_b32 v29, s100, {s // 2}"]
        if s == 24: R += PST("b_24")
        if s == 48: R += PST("b_48")
        if s == NF: R += PST("b_mid")
        if bstamp and s == NF: R += ["s_mov_b32 s45, 0", "s_memrealtime s[100:101]", "s_waitcnt lgkmcnt(0)", "v_writelane_b32 v29, s100, 41"]
        if bstamp and s >= NF: R += ["s_memtime s[100:101]", "s_waitcnt lgkmcnt(0)", f"v_writelane_b32 v29, s100, {s - NF}"]
        nb = nb_of(s); sg = s // 2
        accb = V_F if s < NF else V_S
        BAR = bar_tau(sg)
        for t in range(nb):
            tau = first_tau[s] + t
            fill = [[], []]
            if tau == BAR and sg + 1 < NSTG and sg % bper == bper - 1:
                fill[0] += [VW([("W2", sg + 1 + e_) for e_ in range(bper)] + ([("SO", 0)] if sg == 3 else [])), "s_barrier"]
                for e_ in range(bper):
                    assert all(p_ < tau - 1 for p_, o_ in bplace.items() if o_[2] == "W" and o_[3] == sg + 1 + e_), (sg, e_)
                if sg == 3: fill[1] += [VM("buffer_store_dword v22, v26, s[80:83], s63 offen sc0 sc1", ("OF", 0))]
            if not pack:
                if blocks[tau + LB][0] < NSTEP:
                    fill[0].append(btr(tau + LB, 0)); fill[1].append(btr(tau + LB, 1))
            elif blocks[tau - tau % 2 + LB][0] < NSTEP:
                for n_, g_ in enumerate(tpat):
                    if g_ // 2 == tau % 2 and not ("bk2" in abl and n_ % 2): fill[g_ % 2].append(btr(tau - tau % 2 + LB + n_ // 2, n_ % 2))
            if pack and tau % 2 == 0 and sgap < 2:
                fill[sgap] += defer; defer.clear()
            if cpf2 and s in (12, 34) and t == 3:
                fill[0] += ["s_getpc_b64 s[16:17]", f"{name}_pc{s}:", f"s_mov_b32 s18, code_end - {name}_pc{s}", "s_mov_b32 s19, 0x20000"]
                fill[1] += ["s_lshl_b32 s20, s7, 2", "s_add_u32 s20, s20, s3", "s_lshl_b32 s20, s20, 8", "v_and_b32 v6, 0x80, v25",
                            VM(f"buffer_load_dword a{A_DUM}, v6, s[16:19], s20 offen", ("P", 1000 + s))]
            if s == NF - XR - 6 and t == 5: fill[1] += [VM("buffer_load_dword v27, v24, s[80:83], s30 offen sc1", ("OP", 0))]
            if s == NF - XR and t == 5:
                fill[1] += [VW([("OP", 0)]), f"{name}_o_back:", "v_cmp_eq_u32 vcc, v27, v22", "s_cmp_eq_u64 vcc, exec", f"s_cbranch_scc0 {name}_o_spin", f"{name}_o_out:"]
            if tau in bplace:
                o = bplace[tau]
                pre, d, post = bw_op(o[3], o[4]) if o[2] == "W" else bx_op(o[3], o[4])
                if not pack: fill[0] += pre; fill[1] += d + post
            if pack and tau % 2 == 1:
                mine = [bplace[x] for x in (tau - 1, tau) if x in bplace]
                got = [bw_op(o[3], o[4]) if o[2] == "W" else bx_op(o[3], o[4]) for o in mine]
                if tau == 1 and got: fill[0] += got[0][0] + ["s_nop 0"]
                for n_, (pre, d, post) in enumerate(got):
                    lastop = n_ == len(got) - 1
                    tgt = defer if (sgap < 2 and lastop) else fill[1]
                    if n_ == 0: fill[0] += d[:1]; fill[1] += d[1:]; tgt += post
                    else:
                        fill[0] += pre; fill[1] += d; tgt += post
                nxt = [bplace[x] for x in (tau + 1, tau + 2) if x in bplace]
                if nxt and nxt[0][2] == "W": (defer if sgap < 2 else fill[1]).extend(bw_op(nxt[0][3], nxt[0][4])[0])
            for i in range(2): fill[i] += ev.get((s, t, i), [])
            if s >= VSTART:
                for i in range(2):
                    fill[i] += VS[vi[0]:vi[0] + vper]; vi[0] += vper
            rem = min(LB, first_tau[NSTEP] - tau)
            lg = f"lgkmcnt({max(0, (1 if 'bk2' in abl else 2)*(rem-wgran))})"
            if t == 0 and not bchain: R.append(VW([("X2", s)], lg))
            elif t == 0 and s % 2 == 0: R.append(VW([("X2", s), ("X2", s + 1)], lg))
            elif tau % wgran == 0: R.append(f"s_waitcnt {lg}")
            for i in range(2):
                if bchain:
                    e = tau % 2; tb_ = frag(tau)[1]
                    b = e if tb_ % 2 == 0 else 1 - e
                    k = i if e == 0 else 1 - i
                    c = vr(accb + (tb_ * 2 + b) * 4, 4)
                    cin = "0" if (sg in (0, NF // 2) and i == 0) else c
                    R.append(f"v_mfma_f32_16x16x32_bf16 {c}, {ar(bw_reg(tau - e + k), 4)}, {bx_reg(2 * sg + k, b)}, {cin}")
                else:
                    b = i if t % 2 == 0 else 1 - i
                    c = vr(accb + (t * 2 + b) * 4, 4)
                    cin = "0" if s in (0, NF) else c
                    R.append(f"v_mfma_f32_16x16x32_bf16 {c}, {ar(bw_reg(tau), 4)}, {bx_reg(s, b)}, {cin}")
                R += fill[i]
        return R
    recs = []
    for s in range(NSTEP): recs += bstep(s)
    if bstamp: recs += ["s_memtime s[100:101]", "s_waitcnt lgkmcnt(0)", "v_writelane_b32 v29, s100, 32", "v_writelane_b32 v29, s45, 40", "s_memrealtime s[100:101]", "s_waitcnt lgkmcnt(0)", "v_writelane_b32 v29, s100, 42"]
    recs += PST("b_end") + VS[vi[0]:] + ([] if olds else ["s_nop 7"])
    if olds:
        for b in range(2):
            for t in range(4):
                c = (t * 2 + b) * 4; r = XV + (b * 4 + t) * 2
                for e in (0, 2): recs.append(f"v_pk_fma_f32 v[{V_F+c+e}:{V_F+c+e+1}], v[{V_F+c+e}:{V_F+c+e+1}], v[{V_S+c+e}:{V_S+c+e+1}], v[{resv(c+e)}:{resv(c+e)+1}]")
                for e in range(2): recs.append(f"v_cvt_pk_bf16_f32 v{r+e}, v{V_F+c+2*e}, v{V_F+c+2*e+1}")
                recs.append(f"ds_write_b64 v4, v[{r}:{r+1}] offset:{b*2304 + t*32}")
            for i in range(2): recs.append(f"ds_read_b128 v[{T+(b*2+i)*4}:{T+(b*2+i)*4+3}], v5 offset:{(b*2+i)*1152}")
        for q in range(4):
            recs += [f"s_waitcnt lgkmcnt({[7, 6, 1, 0][q]})", f"buffer_store_dwordx4 v[{T+q*4}:{T+q*4+3}], v{6 if q % 2 == 0 else 8}, s[52:55], s{40+q//2} offen {ofull}"]
    else:
        for b in range(2):
            for tp in range(2):
                r = XV + (b * 2 + tp) * 4
                cs = [((2 * tp + h) * 2 + b) * 4 for h in range(2)]
                if mimic and fmimic:
                    for c in cs: recs += rnd(V_S + c, 4)
                    for c in cs:
                        for e in (0, 2): recs.append(f"v_pk_mul_f32 v[{V_F+c+e}:{V_F+c+e+1}], v[{V_F+c+e}:{V_F+c+e+1}], v[{V_S+c+e}:{V_S+c+e+1}]")
                    for c in cs: recs += rnd(V_F + c, 4)
                    for c in cs:
                        for e in (0, 2): recs.append(f"v_pk_add_f32 v[{V_F+c+e}:{V_F+c+e+1}], v[{V_F+c+e}:{V_F+c+e+1}], v[{resv(c+e)}:{resv(c+e)+1}]")
                else:
                    for c in cs:
                        for e in (0, 2): recs.append(f"v_pk_fma_f32 v[{V_F+c+e}:{V_F+c+e+1}], v[{V_F+c+e}:{V_F+c+e+1}], v[{V_S+c+e}:{V_S+c+e+1}], v[{resv(c+e)}:{resv(c+e)+1}]")
                for h, c in enumerate(cs):
                    for e in range(2): recs.append(f"v_cvt_pk_bf16_f32 v{r+2*h+e}, v{V_F+c+2*e}, v{V_F+c+2*e+1}")
                recs += ["s_nop 1", f"v_permlane16_swap_b32 v{r}, v{r+2}", f"v_permlane16_swap_b32 v{r+1}, v{r+3}"]
                if ofull is None: recs += ["s_nop 0", f"buffer_store_dwordx4 v[{r}:{r+3}], v0, s[52:55], s{40+b} offen offset:{tp*64}"]
            if ofull is not None:
                r0 = XV + b * 8; r1 = r0 + 4
                recs += [f"v_mov_b32 v{T+i}, v{r0+i}" for i in range(4)]
                recs += [f"v_mov_b32_dpp v{r0+i}, v{r1+i} row_ror:8 row_mask:0xf bank_mask:0xc" for i in range(4)]
                recs += [f"buffer_store_dwordx4 v[{r0}:{r0+3}], v6, s[52:55], s{40+b} offen {ofull}"]
                recs += [f"v_mov_b32_dpp v{r1+i}, v{T+i} row_ror:8 row_mask:0xf bank_mask:0x3" for i in range(4)]
                recs += [f"buffer_store_dwordx4 v[{r1}:{r1+3}], v5, s[52:55], s{40+b} offen {ofull}"]
    tr.add("brest", recs)

    res = tr.resolve()
    for l in res["pro"] + res["first"]:
        if "noxr" in abl and l.startswith("buffer_store_dwordx4 a[2") and "s96" in l: l = l.replace("s96", "s82").replace("s[8:11]", "s[80:83]")
        if "nowb" in abl and "a[20" in l and l.startswith("buffer_"): l = "buffer_load_dword a210, v23, s[80:83], s82 offen"
        a(l)
    if "wcont" in abl:
        a("v_lshrrev_b32 v16, 3, v1"); a("v_and_b32 v17, 7, v1"); a("v_lshlrev_b32 v17, 4, v17")
        for i in range(5):
            a(f"s_lshr_b32 s45, s{37+i}, 5"); a(f"v_add_u32 v18, {8*(i%4)}, v16"); a(f"v_mul_lo_u32 v18, v18, s45"); a(f"v_add_u32 v{2+i}, v18, v17")
            a(f"s_and_b32 s{32+i}, s{32+i}, 0xffffff80")
            a(f"s_and_b32 s45, s3, 1"); a("s_lshl_b32 s45, s45, 7"); a(f"s_add_u32 s{32+i}, s{32+i}, s45")
    if "dupx" in abl:
        a("s_and_b32 s45, s3, 1"); a("s_mul_i32 s45, s45, -12288"); a("s_add_u32 s45, s45, 6144")
        a("v_add_u32 v16, s45, v7"); a("v_add_u32 v17, s45, v30")
    a("s_mov_b32 s45, 6")
    a.raw(".p2align 6")
    a.label(f"{name}_loop")
    cnt = [0]
    for l in res["loop"]:
        if "halftr" in abl and l.startswith("ds_read_b64_tr"):
            cnt[0] += 1
            if (cnt[0] - 1) // 2 % 2: continue
        if "halftr" in abl and l.startswith("s_waitcnt lgkmcnt"): l = "s_waitcnt lgkmcnt(2)"
        if "anow" in abl and " lds" in l: continue
        if "anox" in abl and l.startswith("buffer_load_dwordx4 a["): continue
        if "nosc1" in abl and l.startswith("buffer_load_dwordx4 a["): l = l.replace(" sc1", "")
        if "dupx" in abl and l.startswith("s_waitcnt vmcnt"): l = "s_waitcnt vmcnt(%d)" % (int(l.split("(")[1].split(")")[0]) + 8)
        a(l)
        if "dupx" in abl and l.startswith("buffer_load_dwordx4 a["):
            import re
            a(re.sub(r"a\[\d+:\d+\], v(\d+)", lambda m: "a[240:243], v" + ("16" if m.group(1) == "7" else "17"), l))
    if not hoist: a("s_sub_u32 s45, s45, 1"); a("s_cmp_lg_u32 s45, 0")
    a(f"s_cbranch_scc1 {name}_loop")
    for l in res["last"] + res["epi"] + res["bpro"]: a(l)
    cnt = [0]; wc = {}
    for l in res["brest"]:
        if "bhalftr" in abl and l.startswith("ds_read_b64_tr"):
            cnt[0] += 1
            if (cnt[0] - 1) // 2 % 2: continue
        if "bhalftr" in abl and "lgkmcnt(8)" in l: l = l.replace("lgkmcnt(8)", "lgkmcnt(4)")
        if "bnow" in abl and l.startswith("buffer_load_dwordx4 v") and " lds" in l: continue
        if "bnox" in abl and l.startswith("buffer_load_dwordx") and " a[" in l: continue
        if "bwrap" in abl and l.startswith("s_add_u32 s42, s42"):
            cnt.append(1)
            if len(cnt) % 8 == 0: l = f"s_sub_u32 s42, s42, {7*KS}"
        if "bwrap" in abl and (l.startswith("s_add_u32 s92, s92") or l.startswith("s_add_u32 s94, s94")):
            r_ = l.split()[1][:-1]; wc[r_] = wc.get(r_, 0) + 1
            if wc[r_] % 4 == 0:
                inc_ = l.split()[-1]
                a(f"s_mul_i32 s21, {inc_}, 3"); l = f"s_sub_u32 {r_}, {r_}, s21"
        if "bnotr" in abl and l.startswith("ds_read"): continue
        if "bnosc1" in abl and l.startswith("buffer_load") and "sc0" not in l: l = l.replace(" sc1", "")
        if "noex" in abl and l.startswith("buffer_store_dwordx4") and "s70" in l: l = l.replace("s70", "s10")
        if "nod" in abl and l.startswith("buffer_load_dwordx4") and "s71" in l: l = l.replace("s71", "s10")
        if "bnobar" in abl and l.startswith("s_barrier"): continue
        if "bnomfma" in abl and l.startswith("v_mfma"): continue
        a(l)
    if stamp or istamp or bstamp or fstamp:
        a("s_waitcnt vmcnt(0)")
        for l in PST("end"): a(l)
        a(f"""
        s_mov_b32 s10, {WS_DBG + 0x100000}
        s_lshl_b32 s7, s2, 2
        s_add_u32 s7, s7, s3
        s_lshl_b32 s7, s7, 8
        s_add_u32 s7, s7, {WS_DBG + 0x40000}
        buffer_store_dword v29, v20, s[8:11], s7 offen
        """)
        a.raw("; STAMPS " + " ".join(names))
        if probe:
            lo, hi, kind = probe
            i0, i1 = names.index(lo), names.index(hi)
            o = 1 if kind == "cyc" else 0
            a(f"""
            s_cmp_lg_u32 s78, 300
            s_cbranch_scc1 {name}_done
            v_readlane_b32 s12, v29, {2*i0+o}
            v_readlane_b32 s13, v29, {2*i1+o}
            s_nop 4
            s_sub_u32 s12, s13, s12
            s_lshr_b32 s12, s12, {5 if kind == "cyc" else 0}
            s_add_u32 s12, s12, 1000
            s_min_u32 s12, s12, 20000
            {name}_probe:
            s_memrealtime s[14:15]
            s_waitcnt lgkmcnt(0)
            s_sub_u32 s13, s14, s98
            s_cmp_lt_u32 s13, s12
            s_cbranch_scc1 {name}_probe
            """)
    a.label(f"{name}_done")
    a("s_endpgm")
    for tag, ld in (("spin", "buffer_load_dword v12, v23, s[80:83], s35 offen sc0 sc1"),
                    ("g", "buffer_load_dwordx4 v[16:19], v24, s[80:83], s96 offen sc1"),
                    ("h", f"buffer_load_dword v227, v226, s[80:83], s47 offen {hpf}"),
                    *([("st", "\n".join(STL)), ("l", f"buffer_load_dword v28, v19, s[80:83], s97 offen {pollf}")] if fast else []),
                    ("o", "buffer_load_dword v27, v24, s[80:83], s30 offen sc1"),
                    ("e", "buffer_load_dword v26, v20, s[80:83], s69 offen sc0 sc1")):
        if tag == "h" and twop:
            a.label(f"{name}_h_spin")
            a(f"""
            {ld}
            s_waitcnt vmcnt(0)
            v_cmp_eq_u32 vcc, v227, v22
            s_cmp_eq_u64 vcc, exec
            s_cbranch_scc1 {name}_h_go
            {f"s_sleep {hsl}" if hsl else ""}
            s_add_u32 s45, s45, 1
            s_cmp_lt_u32 s45, {SPIN}
            s_cbranch_scc1 {name}_h_spin
            {name}_h_go:
            """)
            for l in XB: a(l)
            a(f"s_branch {name}_h_ret")
            continue
        a.label(f"{name}_{tag}_spin")
        a(f"""
        {"s_sleep 1" if (hsleep or tag != "h") else ""}
        {ld}
        s_waitcnt vmcnt(0)
        s_add_u32 s45, s45, 1
        s_cmp_lt_u32 s45, {SPIN}
        s_cbranch_scc1 {name}_{tag}_back
        s_branch {name}_{tag}_out
        """)
    return kernel_desc(name, 512, 102, 256)

def epi_setup(part):
    A = lambda s: ["\n".join(L(s))]
    if part == 1:
        return L(f"""
    s_lshr_b32 s75, s75, 1
    s_mul_i32 s75, s75, {KS}
    s_lshr_b32 s74, s76, 1
    s_mul_i32 s74, s74, {KS}
    s_mul_i32 s76, s73, {1280 if PAD else 512}
    s_sub_u32 s76, s74, s76
    s_add_u32 s76, s76, {2560 if PAD else 1024}
    s_lshl_b32 s73, s73, 9
    s_add_u32 s74, s74, s73
    s_add_u32 s74, s74, 512
    v_and_b32 v5, 15, v1
    v_lshrrev_b32 v6, 4, v1
    v_lshlrev_b32 v6, 2, v6
    v_sub_u32 v5, v5, v6
    v_and_b32 v6, 1, v1
    v_cmp_eq_u32 s[{PAR}:{PAR+1}], 1, v6
    v_sub_u32 v5, v5, v6
    v_cmp_le_i32 s[{SC}:{SC+1}], 0, v5
    v_cmp_le_i32 s[{SC+2}:{SC+3}], 2, v5
    v_mov_b32 v5, 0xffff
    v_mov_b32 v6, 0xffff0000
    """)
    return L(f"""
    s_lshl_b32 s32, s78, 11
    s_add_u32 s32, s32, {FL_HALO}
    s_lshl_b32 s33, s78, 7
    s_add_u32 s33, s33, {FL_HALOF}
    s_sub_u32 s34, s78, 1
    s_sub_u32 s35, s78, 125
    v_lshlrev_b32 v31, 4, v1
    """) + A("s_cmp_eq_u32 s3, 0\ns_cselect_b32 s34, s35, s34") + A("s_cmp_eq_u32 s6, 0\ns_cselect_b32 s34, s78, s34") + L(f"""
    s_lshl_b32 s35, s34, 7
    s_add_u32 s35, s35, {FL_HALOF}
    s_lshl_b32 s34, s34, 11
    s_add_u32 s34, s34, {FL_HALO}
    v_cndmask_b32 v5, v5, v6, s[{PAR}:{PAR+1}]
    v_cndmask_b32 v20, 0, v5, s[{SC}:{SC+1}]
    v_cndmask_b32 v21, 0, v5, s[{SC+2}:{SC+3}]
    v_xor_b32 v6, v20, v5
    v_xor_b32 v8, v21, v5
    v_mov_b32 v5, 0xff800000
    s_mov_b32 s38, {f2u(0.17677669529663687):#x}
    s_mov_b32 s39, s38
    s_mov_b32 s12, {f2u(-1.4426950408889634):#x}
    s_mov_b32 s13, s12
    s_mov_b32 s14, 1.0
    s_mov_b32 s15, 1.0
    """) + A(f"""
    s_cmp_eq_u32 s6, 0
    s_cselect_b64 s[{V0M}:{V0M+1}], s[{SC}:{SC+1}], -1
    s_cselect_b64 s[{V0M+2}:{V0M+3}], s[{SC+2}:{SC+3}], -1
    """)

def epilogue(name, mimic, hpost, PST, hp, sing, hrep, ilv):
    F = []
    WT = "sc0 sc1"
    def hv(b): return "v30" if b & 1 else "v7"
    def ho(b): return (b >> 1) * PSTR
    def a(s): F.extend(L(s))
    def areg(t, b): return A_QKV + (t * 4 + b) * 4
    def pack(dst, t, b, tmp):
        for r in range(4): a(f"v_accvgpr_read_b32 v{tmp+r}, a{areg(t, b)+r}")
        a(f"v_cvt_pk_bf16_f32 v{dst}, v{tmp}, v{tmp+1}")
        a(f"v_cvt_pk_bf16_f32 v{dst+1}, v{tmp+2}, v{tmp+3}")
    def silu_blocks(blks, outs):
        for G, U in blks:
            for h in (0, 2):
                a(f"v_pk_mul_f32 v[{U+h}:{U+h+1}], v[{G+h}:{G+h+1}], v[{U+h}:{U+h+1}]")
                a(f"v_pk_mul_f32 v[{G+h}:{G+h+1}], v[{G+h}:{G+h+1}], s[12:13]")
        for G, U in blks:
            for r in range(4): a(f"v_exp_f32 v{G+r}, v{G+r}")
        for G, U in blks:
            for h in (0, 2): a(f"v_pk_add_f32 v[{G+h}:{G+h+1}], v[{G+h}:{G+h+1}], s[14:15]")
        for G, U in blks:
            for r in range(4): a(f"v_rcp_f32 v{G+r}, v{G+r}")
        for G, U in blks:
            for h in (0, 2): a(f"v_pk_mul_f32 v[{G+h}:{G+h+1}], v[{G+h}:{G+h+1}], v[{U+h}:{U+h+1}]")
        for (G, U), O in zip(blks, outs):
            a(f"v_cvt_pk_bf16_f32 v{O}, v{G}, v{G+1}")
            a(f"v_cvt_pk_bf16_f32 v{O+1}, v{G+2}, v{G+3}")
    def post_h():
        a(f"v_and_b32 v14, {hrep-1}, v1"); a("v_lshlrev_b32 v14, 7, v14")
        F.extend(PST("preS")); F.append(VW([("S", 0), ("S", 1)])); F.extend(PST("S")); F.append("s_barrier")
        F.append(VM("buffer_store_dword v22, v14, s[80:83], s62 offen sc0 sc1", ("HF", 0)))
    QF, KF, V0, V1 = 32, 48, 68, 78
    def pickup():
        F.extend(PST("preG1")); F.append(VW([("G1", 0)])); F.extend(PST("G1"))
        F.append("\n".join(L(f"""
        {name}_spin_back:
        v_cmp_eq_u32 vcc, v12, v22
        s_cmp_eq_u64 vcc, exec
        s_cbranch_scc0 {name}_spin_spin
        {name}_spin_out:
        """)))
        F.extend(PST("spin"))
        F.append(VM(f"buffer_load_dwordx4 v[{KF}:{KF+3}], v31, s[80:83], s34 offen sc0 sc1", ("D", 0)))
        F.append(VM(f"buffer_load_dwordx4 v[64:67], v31, s[80:83], s34 offen offset:1024 sc0 sc1", ("D", 1)))
    PQ = []
    if ilv:
        for b in range(4):
            PQ += [(4, QF + 4 * b + 2 * h, h, b) for h in range(2)]
            if b < 3: PQ += [(4, KF + 4 * (b + 1) + 2 * h, 2 + h, b) for h in range(2)]
        for b in range(3): PQ += [(8, V0 + 2 * (b + 1), 4, b), (8, V1 + 2 * (b + 1), 5, b)]
    def drain(n, cnt):
        for _ in range(cnt):
            if PQ and PQ[0][0] <= n:
                _, dst, t, b = PQ.pop(0)
                r = areg(t, b)
                a(f"v_accvgpr_read_b32 v9, a{r}\nv_accvgpr_read_b32 v10, a{r+1}\nv_accvgpr_read_b32 v11, a{r+2}\nv_accvgpr_read_b32 v13, a{r+3}")
                a(f"v_cvt_pk_bf16_f32 v{dst}, v9, v10\nv_cvt_pk_bf16_f32 v{dst+1}, v11, v13")
    def singles():
        for b0 in (0, 2):
            O = gu_base(19, b0)
            if b0: drain(99, ilv)
            silu_blocks([(gu_base(12, b0), gu_base(19, b0)), (gu_base(12, b0 + 1), gu_base(19, b0 + 1))], [O, O + 2])
            F.append(VM(f"buffer_store_dwordx2 v[{O}:{O+1}], v14, s[48:51], s74 offen offset:{ho(b0)} {WT}", ("S", 0)))
            F.append(VM(f"buffer_store_dwordx2 v[{O+2}:{O+3}], v14, s[48:51], s76 offen offset:{ho(b0)} {WT}", ("S", 1 if (b0 and sing == "last") else 0)))
    a(f"s_mul_i32 s36, s6, {PSTR//2}"); a("v_lshl_add_u32 v14, v1, 3, s36")
    if sing == "first":
        a("s_nop 7"); singles()
    n = 0
    for i in range(3):
        for b in range(4):
            O = gu_base(13 + 2 * i, b)
            silu_blocks([(gu_base(6 + 2 * i, b), gu_base(13 + 2 * i, b)), (gu_base(7 + 2 * i, b), gu_base(14 + 2 * i, b))], [O, O + 2])
            if n == hp[0]:
                F.extend(PST("preH")); F.append(VW([("H", 0), ("H", 1)])); F.extend(PST("H"))
                F.append(VM("buffer_store_dword v22, v23, s[80:83], s33 offen sc0 sc1", ("F", 0)))
            if n == hp[1]: F.append(VM("buffer_load_dword v12, v23, s[80:83], s35 offen sc0 sc1", ("G1", 0)))
            if n == hp[2]: pickup()
            F.append(VM(f"buffer_store_dwordx4 v[{O}:{O+3}], {hv(b)}, s[48:51], s75 offen offset:{ho(b)} {WT}", ("S", 1 if (n == 11 and sing == "first") else 0)))
            n += 1
            drain(n, ilv)
        a(f"s_add_u32 s75, s75, {KS}")
    if sing != "first": singles()
    F.extend(PST("silu"))
    HP_AT = {"s": None, "p0": 0, "p1": 6, "p2": 12, "p3": 18}[hpost]
    T = 96
    k = 0
    drain(99, 99)
    for b in range(4 if not ilv else 0):
        if k == HP_AT: post_h()
        for h in range(2): pack(QF + 4 * b + 2 * h, h, b, T + 4 * (k % 4)); k += 1
        if b < 3:
            for h in range(2): pack(KF + 4 * (b + 1) + 2 * h, 2 + h, b, T + 4 * (k % 4)); k += 1
            pack(V0 + 2 * (b + 1), 4, b, T + 4 * (k % 4)); k += 1
            pack(V1 + 2 * (b + 1), 5, b, T + 4 * (k % 4)); k += 1
    a(f"v_mov_b32 v{V0+8}, v24"); a(f"v_mov_b32 v{V0+9}, v25"); a(f"v_mov_b32 v{V1+8}, v26"); a(f"v_mov_b32 v{V1+9}, v27")
    F.extend(PST("pack")); F.append(VW([("D", 0), ("D", 1)])); F.extend(PST("D"))
    if hpost == "s": post_h()
    S = 112
    def kf(i): return f"v[16:19]" if i == 4 else f"v[{KF+4*i}:{KF+4*i+3}]"
    for b in range(4):
        a(f"v_mfma_f32_16x16x32_bf16 v[{S+8*b}:{S+8*b+3}], {kf(b)}, v[{QF+4*b}:{QF+4*b+3}], 0")
        a(f"v_mfma_f32_16x16x32_bf16 v[{S+8*b+4}:{S+8*b+7}], {kf(b+1)}, v[{QF+4*b}:{QF+4*b+3}], 0")
    a(f"v_mov_b32 v{V0}, v64"); a(f"v_mov_b32 v{V0+1}, v65"); a(f"v_mov_b32 v{V1}, v66"); a(f"v_mov_b32 v{V1+1}, v67")
    c = 0.17677669529663687 * 1.4426950408889634
    a(f"s_mov_b32 s96, {f2u(c if not mimic else 1.4426950408889634):#x}")
    E = 96
    for b in range(4):
        s_ = S + 8 * b
        for i in range(2):
            a(f"v_cndmask_b32 v{s_+2*i}, v{s_+2*i}, v{s_+2*i+1}, s[{PAR}:{PAR+1}]")
            a(f"v_cndmask_b32 v{s_+4+2*i}, v{s_+4+2*i}, v{s_+4+2*i+1}, s[{PAR}:{PAR+1}]")
        for i in range(2):
            a(f"v_cndmask_b32 v{E+2*b+i}, v{s_+2*i}, v{s_+4+2*i}, s[{SC+2*i}:{SC+2*i+1}]")
    if mimic:
        for rnd in range(2):
            for b in range(4): a(f"v_cvt_pk_bf16_f32 v{E+2*b+1}, v{E+2*b}, v{E+2*b+1}")
            for b in range(4):
                a(f"v_lshlrev_b32 v{E+2*b}, 16, v{E+2*b+1}")
                a(f"v_and_b32 v{E+2*b+1}, 0xffff0000, v{E+2*b+1}")
            if rnd == 0:
                for b in range(4): a(f"v_pk_mul_f32 v[{E+2*b}:{E+2*b+1}], v[{E+2*b}:{E+2*b+1}], s[38:39]")
    for i in range(2): a(f"v_cndmask_b32 v{E+i}, v5, v{E+i}, s[{V0M+2*i}:{V0M+2*i+1}]")
    MX, TT = 104, 108
    for b in range(4): a(f"v_max_f32 v{MX+b}, v{E+2*b}, v{E+2*b+1}")
    def allred(op):
        for sw in ("v_permlane16_swap_b32", "v_permlane32_swap_b32"):
            for b in range(4): a(f"v_mov_b32 v{TT+b}, v{MX+b}")
            for b in range(4): a(f"{sw} v{MX+b}, v{TT+b}")
            for b in range(4): a(f"{op} v{MX+b}, v{MX+b}, v{TT+b}")
    F.append("@HLOAD")
    allred("v_max_f32")
    for b in range(4): a(f"v_mul_f32 v{MX+b}, s96, v{MX+b}")
    for b in range(4):
        for i in range(2): a(f"v_fma_f32 v{E+2*b+i}, v{E+2*b+i}, s96, -v{MX+b}")
    for i in range(8): a(f"v_exp_f32 v{E+i}, v{E+i}")
    for b in range(4): a(f"v_add_f32 v{MX+b}, v{E+2*b}, v{E+2*b+1}")
    allred("v_add_f32")
    for b in range(4): a(f"v_rcp_f32 v{MX+b}, v{MX+b}")
    for b in range(4):
        for i in range(2): a(f"v_mul_f32 v{E+2*b+i}, v{E+2*b+i}, v{MX+b}")
    for i in range(8): a(f"v_cvt_pk_bf16_f32 v{E+i}, v{E+i}, v{E+i}")
    P = QF
    for b in range(4):
        a(f"v_and_b32 v{P+4*b}, v6, v{E+2*b}")
        a(f"v_and_b32 v{P+4*b+1}, v8, v{E+2*b+1}")
        a(f"v_and_b32 v{P+4*b+2}, v20, v{E+2*b}")
        a(f"v_and_b32 v{P+4*b+3}, v21, v{E+2*b+1}")
    F.append("@HCHECK")
    O = S
    for b in range(4):
        a(f"v_mfma_f32_16x16x32_bf16 v[{O+8*b}:{O+8*b+3}], v[{V0+2*b}:{V0+2*b+3}], v[{P+4*b}:{P+4*b+3}], 0")
        a(f"v_mfma_f32_16x16x32_bf16 v[{O+8*b+4}:{O+8*b+7}], v[{V1+2*b}:{V1+2*b+3}], v[{P+4*b}:{P+4*b+3}], 0")
    a("s_add_u32 s75, s5, 112")
    a(f"s_mul_i32 s75, s75, {KS}")
    a("s_nop 1")
    OP = KF
    for b in range(4):
        for r in range(4): a(f"v_cvt_pk_bf16_f32 v{OP+4*b+r}, v{O+8*b+2*r}, v{O+8*b+2*r+1}")
    F.append("@HLATE")
    for b in range(4):
        F.append(VM(f"buffer_store_dwordx4 v[{OP+4*b}:{OP+4*b+3}], {hv(b)}, s[48:51], s75 offen offset:{ho(b)} {WT}", ("SO", 0)))
    return F
```

```python
import struct
def f2u(x): return struct.unpack("<I", struct.pack("<f", x))[0]
import os
PAD = os.environ.get('PAD', '1') == '1'
PSTR = 3072 if PAD else 2048
ODD = 1152 if PAD else 1024
SKIP = 128 if PAD else 0
KS = 64 * PSTR
_KS = 196608
WS_XN = 0
XN_BYTES = 32 * KS
WS_XR = 6 << 20
WS_HO = 12 << 20
HO_BYTES = 144 * KS
WS_FL = 40 << 20
FL_G2 = 0
FL_HALOF = 0x40000
FL_LN = 0x60000
FL_EP = 0x80000
FL_HALO = 0x100000
FL_BYTES = 0x300000
WS_WB = 44 << 20
WB_WO = 1024 * 512
WB_BYTES = 4608 * 512
WS_DBG = 64 << 20
FL_G = 0x90000
FL_H = 0xa0000
FL_O = 0xb0000
FL_ST = 0xc0000
```
